```python
import torch

def _softmax(x, axis=-1):
    return torch.softmax(x, dim=axis)
def _gelu(x):
    return torch.nn.functional.gelu(x, approximate="tanh")
def _silu(x):
    return torch.nn.functional.silu(x)
def _sigmoid(x):
    return torch.sigmoid(x)
def _layernorm(x, axis=-1, eps=1e-5):
    m = x.mean(dim=axis, keepdim=True)
    v = x.var(dim=axis, keepdim=True, unbiased=False)
    return (x - m) / torch.sqrt(v + eps)
def _scatter_add(tgt, idx, src, axis=0):
    return tgt.clone().index_add_(axis, idx, src)
def _segment_sum(src, seg, n):
    out = torch.zeros((n,) + src.shape[1:], dtype=src.dtype)
    return out.index_add_(0, seg, src)
def _pad(x, pw):
    flat = tuple(v for pair in reversed(pw) for v in pair)
    return torch.nn.functional.pad(x, flat)

kernel_name = 'concat_heads__ssm_conv_h3__sliding_block__prompt'

def setup_inputs():

    _w = (lambda a: (lambda t: t.to(torch.bfloat16) if t.is_floating_point() else t)(torch.as_tensor(a)))
    def _A_setup():
        B, S, D = 1, 2048, 640
        ks = 4
        return {
            "q": _w((lambda *s: torch.randn(*s, dtype=torch.bfloat16) * 0.05)(B, S, D)),
            "k": _w((lambda *s: torch.randn(*s, dtype=torch.bfloat16) * 0.8)(B, S, D)),
            "v": _w((lambda *s: torch.randn(*s, dtype=torch.bfloat16) * 0.8)(B, S, D)),
            "shift_k": _w((lambda *s: torch.randn(*s, dtype=torch.bfloat16) * 0.8)(D, ks) * 0.5),
            "ssm_k": _w((lambda *s: torch.randn(*s, dtype=torch.bfloat16) * 3.2)(D, S) * (1.0 / S ** 0.5)),
            "ssm_D": _w((lambda *s: torch.randn(*s, dtype=torch.bfloat16) * 0.8)(D)),
        }
    _A_in = _A_setup()

    def _B_setup():
        B, S, D = 1, 2048, 640
        return {
            "x": _w((lambda *s: torch.randn(*s, dtype=torch.bfloat16) * 0.2)(B, S, D)),
            "wqkv": _w((lambda *s: torch.randn(*s, dtype=torch.bfloat16) * 0.2)(D, 3 * D)),
            "wo": _w((lambda *s: torch.randn(*s, dtype=torch.bfloat16) * 0.05)(D, D)),
        }
    _B_in = _B_setup()

    return {
        "A_q": _A_in["q"],
        "A_k": _A_in["k"],
        "A_v": _A_in["v"],
        "A_shift_k": _A_in["shift_k"],
        "A_ssm_k": _A_in["ssm_k"],
        "A_ssm_D": _A_in["ssm_D"],
        "B_x": _B_in["x"],
        "B_wqkv": _B_in["wqkv"],
        "B_wo": _B_in["wo"],
    }

def reference(A_q, A_k, A_v, A_shift_k, A_ssm_k, A_ssm_D, B_x, B_wqkv, B_wo):
    def _A_ref(q, k, v, shift_k, ssm_k, ssm_D):
        B, S, D = q.shape
        ks = shift_k.shape[-1]
        k_pad = _pad(k, ((0, 0), (ks - 1, 0), (0, 0)))
        k_shift = torch.zeros_like(k)
        for t in range(ks):
            k_shift = k_shift + k_pad[:, t:t + S, :] * shift_k[:, ks - 1 - t][None, None, :]
        kv = k_shift * v
        L = 2 * S
        kv_pad = _pad(kv, ((0, 0), (0, S), (0, 0)))
        kf_pad = _pad(ssm_k, ((0, 0), (0, S)))
        kv_f = (lambda x, axes=(-2,-1): torch.fft.rfft2(x.float(), dim=axes))(kv_pad[:, None, :, :], axes=(1, 2))
        kf_f = (lambda x, axes=(-2,-1): torch.fft.rfft2(x.float(), dim=axes))(kf_pad[:, None, :], axes=(1, 2))
        kf_f = (lambda x, *d: x.permute(*d))(kf_f, 1, 2, 0)
        y_f = kv_f * kf_f[None, :, :, :]
        y = (lambda x, s, axes=(-2,-1): torch.fft.irfft2(x, s=s, dim=axes).to(torch.bfloat16))(y_f, (1, L), axes=(1, 2))[:, 0, :S, :]
        y = y + kv * ssm_D[None, None, :]
        return q * y

    def _B_ref(x, wqkv, wo):
        B, S, D = x.shape
        H = 32; Dh = D // H; W = 256
        qkv = (lambda x, *d: x.permute(*d))((x @ wqkv).reshape(B, S, 3, H, Dh), 2, 0, 3, 1, 4)
        q, k, v = qkv[0], qkv[1], qkv[2]
        scores = torch.einsum("bhqd,bhkd->bhqk", q, k) * (Dh ** -0.5)
        idx = torch.arange(S)
        mask = (idx[:, None] - idx[None, :] >= 0) & (idx[:, None] - idx[None, :] < W)
        scores = torch.where(mask[None, None], scores, -1e9)
        p = _softmax(scores, axis=-1)
        o = torch.einsum("bhqk,bhkd->bhqd", p, v)
        return (lambda x, *d: x.permute(*d))(o, 0, 2, 1, 3).reshape(B, S, D) @ wo

    a = _A_ref(A_q, A_k, A_v, A_shift_k, A_ssm_k, A_ssm_D)
    b = _B_ref(B_x, B_wqkv, B_wo)
    return torch.concatenate([a, b], axis=-1)
```

```python
import sys

NAME = "concat_heads__ssm_conv_h3__sliding_block__prompt"

WS_XR = 0x000000
WS_QK4 = 0x280000
WS_VG = 0x780000
WS_O4 = 0xA00000
WS_Y2T = 0xC80000
SZ_26 = 2621440
SZ_QK4 = 5242880

KA = dict(q=0, k=8, v=16, shift=24, ssmk=32, ssmD=40, x=48, wqkv=56, wo=64, out=72, dbg=80, ws=88)


class G:
    def __init__(self):
        self.lines = []
        self.uid = 0

    def __call__(self, s):
        self.lines.append("    " + s)

    def label(self, name):
        self.lines.append(name + ":")

    def raw(self, s):
        self.lines.append(s)

    def newlabel(self, p="L"):
        self.uid += 1
        return f".{p}_{self.uid}"

    def nop(self, n):
        while n > 0:
            k = min(n, 16)
            self(f"s_nop {k-1}")
            n -= k


def vr(a, n=1):
    return f"v{a}" if n == 1 else f"v[{a}:{a+n-1}]"


def sr(a, n=1):
    return f"s{a}" if n == 1 else f"s[{a}:{a+n-1}]"


def make_srd(g, d, ptr, off, size):
    if off:
        g(f"s_add_u32 s{d}, s{ptr}, {off:#x}")
        g(f"s_addc_u32 s{d+1}, s{ptr+1}, 0")
    else:
        g(f"s_mov_b32 s{d}, s{ptr}")
        g(f"s_mov_b32 s{d+1}, s{ptr+1}")
    g(f"s_mov_b32 s{d+2}, {size:#x}")
    g(f"s_mov_b32 s{d+3}, 0x00020000")


def kernel_begin(g, name):
    g.raw(f".globl {name}")
    g.raw(".p2align 8")
    g.raw(f".type {name},@function")
    g.label(name)


def kernel_desc(g, name, vgpr, sgpr=102):
    acc = (vgpr + 3) // 4 * 4
    g.raw(f".amdhsa_kernel {name}")
    g.raw(f"  .amdhsa_next_free_vgpr {vgpr}")
    g.raw(f"  .amdhsa_next_free_sgpr {sgpr}")
    g.raw(f"  .amdhsa_accum_offset {acc}")
    g.raw("  .amdhsa_group_segment_fixed_size 0")
    g.raw("  .amdhsa_kernarg_size 96")
    g.raw("  .amdhsa_user_sgpr_count 2")
    g.raw("  .amdhsa_user_sgpr_kernarg_segment_ptr 1")
    g.raw("  .amdhsa_system_sgpr_workgroup_id_x 1")
    g.raw("  .amdhsa_float_denorm_mode_32 3")
    g.raw(".end_amdhsa_kernel")


def gen_a1(g, s_unit):
    g(f"s_load_dwordx4 s[4:7], s[0:1], {KA['k']}")
    g(f"s_load_dwordx2 s[8:9], s[0:1], {KA['shift']}")
    g(f"s_load_dwordx2 s[10:11], s[0:1], {KA['ws']}")
    g(f"s_mul_hi_u32 s12, {s_unit}, 0x1999999a")
    g(f"s_mul_i32 s13, s12, 10")
    g(f"s_sub_u32 s13, {s_unit}, s13")
    g("v_and_b32 v1, 63, v0")
    g("v_and_b32 v2, 7, v1")
    g("v_lshrrev_b32 v3, 3, v1")
    g("s_lshl_b32 s14, s12, 6")
    g("v_lshl_add_u32 v4, v3, 3, s14")
    g("s_lshl_b32 s15, s13, 6")
    g("v_lshl_add_u32 v5, v2, 3, s15")
    g("s_movk_i32 s16, 1280")
    g("v_mul_lo_u32 v6, v4, s16")
    g("v_lshl_add_u32 v6, v5, 1, v6")
    g("v_add_u32 v7, 5120, v6")
    g("v_subrev_u32 v8, 3840, v6")
    g("v_cmp_eq_u32 vcc, 0, v4")
    g("v_mov_b32 v9, 0x80000000")
    g("s_nop 1")
    g("v_cndmask_b32 v8, v8, v9, vcc")
    g("v_lshlrev_b32 v9, 3, v5")
    g("v_lshlrev_b32 v10, 12, v5")
    g("v_sub_u32 v11, 2040, v4")
    g("v_lshl_add_u32 v10, v11, 1, v10")
    g("s_waitcnt lgkmcnt(0)")
    make_srd(g, 20, 4, 0, SZ_26)
    make_srd(g, 24, 6, 0, SZ_26)
    make_srd(g, 28, 8, 0, 5120)
    make_srd(g, 32, 10, WS_XR, SZ_26)
    KR = 16
    VR = 60
    WR = 92
    for r in range(3):
        g(f"buffer_load_dwordx4 {vr(KR+4*r,4)}, v8, s[20:23], 0 offen offset:{1280*r}")
    for r in range(8):
        vo = "v6" if r < 4 else "v7"
        g(f"buffer_load_dwordx4 {vr(KR+12+4*r,4)}, {vo}, s[20:23], 0 offen offset:{1280*(r%4)}")
    for j in range(4):
        g(f"buffer_load_dwordx4 {vr(WR+4*j,4)}, v9, s[28:31], 0 offen offset:{16*j}")
    for r in range(8):
        vo = "v6" if r < 4 else "v7"
        g(f"buffer_load_dwordx4 {vr(VR+4*r,4)}, {vo}, s[24:27], 0 offen offset:{1280*(r%4)}")
    g("s_mov_b32 s17, 0xffff0000")
    g("s_waitcnt vmcnt(0)")
    KF = 108
    WF = 120
    T = 124
    OUT = 136
    PK = 152
    for ch in range(8):
        j, hi = ch // 2, ch % 2
        for r in range(11):
            src = KR + 4 * r + j
            if hi:
                g(f"v_and_b32 v{KF+r}, s17, v{src}")
            else:
                g(f"v_lshlrev_b32 v{KF+r}, 16, v{src}")
        g(f"v_lshlrev_b32 v{WF+0}, 16, v{WR+2*ch}")
        g(f"v_and_b32 v{WF+1}, s17, v{WR+2*ch}")
        g(f"v_lshlrev_b32 v{WF+2}, 16, v{WR+2*ch+1}")
        g(f"v_and_b32 v{WF+3}, s17, v{WR+2*ch+1}")
        for s0 in range(0, 8, 2):
            for u in range(2):
                s = s0 + u
                t = T + 6 * u
                g(f"v_mul_f32 v{t}, v{KF+s}, v{WF+3}")
                g(f"v_mul_f32 v{t+1}, v{KF+s+1}, v{WF+2}")
                g(f"v_mul_f32 v{t+2}, v{KF+s+2}, v{WF+1}")
                g(f"v_mul_f32 v{t+3}, v{KF+s+3}, v{WF+0}")
                src = VR + 4 * s + j
                if hi:
                    g(f"v_and_b32 v{t+4}, s17, v{src}")
                else:
                    g(f"v_lshlrev_b32 v{t+4}, 16, v{src}")
            for u in range(2):
                t = T + 6 * u
                for q in range(4):
                    g(f"v_cvt_pk_bf16_f32 v{t+q}, 0, v{t+q}")
            for q in range(1, 4):
                for u in range(2):
                    t = T + 6 * u
                    g(f"v_add_f32 v{t}, v{t}, v{t+q}")
                for u in range(2):
                    t = T + 6 * u
                    g(f"v_cvt_pk_bf16_f32 v{t}, 0, v{t}")
            for u in range(2):
                t = T + 6 * u
                g(f"v_mul_f32 v{OUT+s0+u}, v{t}, v{t+4}")
        for e in range(4):
            g(f"v_cvt_pk_bf16_f32 v{PK+4*ch+e}, v{OUT+7-2*e}, v{OUT+6-2*e}")
    g("s_mov_b32 s18, 0")
    for ch in range(8):
        g(f"s_mov_b32 s18, {4096*ch}")
        g(f"buffer_store_dwordx4 {vr(PK+4*ch,4)}, v10, s[32:35], s18 offen")
    g("s_endpgm")


def gen_a3(g, s_unit):
    g(f"s_load_dwordx2 s[4:5], s[0:1], {KA['q']}")
    g(f"s_load_dwordx2 s[6:7], s[0:1], {KA['out']}")
    g(f"s_load_dwordx2 s[10:11], s[0:1], {KA['ws']}")
    g(f"s_mul_hi_u32 s12, {s_unit}, 0x1999999a")
    g(f"s_mul_i32 s13, s12, 10")
    g(f"s_sub_u32 s13, {s_unit}, s13")
    g("v_and_b32 v1, 63, v0")
    g("v_and_b32 v2, 7, v1")
    g("v_lshrrev_b32 v3, 3, v1")
    g("s_lshl_b32 s14, s12, 6")
    g("v_lshl_add_u32 v4, v3, 3, s14")
    g("s_lshl_b32 s15, s13, 6")
    g("v_lshl_add_u32 v5, v2, 3, s15")
    g("s_movk_i32 s16, 1280")
    g("v_mul_lo_u32 v6, v4, s16")
    g("v_lshl_add_u32 v7, v5, 1, v6")
    g("v_add_u32 v8, 5120, v7")
    g("v_lshlrev_b32 v6, 1, v6")
    g("v_lshl_add_u32 v9, v5, 1, v6")
    g("v_lshlrev_b32 v10, 12, v5")
    g("v_lshl_add_u32 v10, v4, 1, v10")
    g("s_waitcnt lgkmcnt(0)")
    make_srd(g, 20, 4, 0, SZ_26)
    make_srd(g, 24, 6, 0, 2 * SZ_26)
    make_srd(g, 28, 10, WS_Y2T, SZ_26)
    QR = 16
    YR = 48
    for r in range(8):
        vo = "v7" if r < 4 else "v8"
        g(f"buffer_load_dwordx4 {vr(QR+4*r,4)}, {vo}, s[20:23], 0 offen offset:{1280*(r%4)}")
    for ch in range(8):
        g(f"s_mov_b32 s18, {4096*ch}")
        g(f"buffer_load_dwordx4 {vr(YR+4*ch,4)}, v10, s[28:31], s18 offen")
    g("s_mov_b32 s17, 0xffff0000")
    g("s_waitcnt vmcnt(0)")
    T = 80
    PK = 96
    for s in range(8):
        for j in range(4):
            t = T + 4 * (j % 2)
            g(f"v_lshlrev_b32 v{t}, 16, v{QR+4*s+j}")
            g(f"v_and_b32 v{t+1}, s17, v{QR+4*s+j}")
            for u in range(2):
                src = YR + 4 * (2 * j + u) + s // 2
                if s % 2:
                    g(f"v_and_b32 v{t+2+u}, s17, v{src}")
                else:
                    g(f"v_lshlrev_b32 v{t+2+u}, 16, v{src}")
            g(f"v_mul_f32 v{t}, v{t}, v{t+2}")
            g(f"v_mul_f32 v{t+1}, v{t+1}, v{t+3}")
            g(f"v_cvt_pk_bf16_f32 v{PK+4*s+j}, v{t}, v{t+1}")
    for s in range(8):
        g(f"s_mov_b32 s18, {2560*s}")
        g(f"buffer_store_dwordx4 {vr(PK+4*s,4)}, v9, s[24:27], s18 offen")
    g("s_endpgm")


G1_NS = 5
G1_STAGE = 16384


def gen_gemm1(g):
    NS = G1_NS
    NIT = 20
    g(f"s_load_dwordx4 s[4:7], s[0:1], {KA['x']}")
    g(f"s_load_dwordx2 s[8:9], s[0:1], {KA['ws']}")
    g("s_and_b32 s10, s2, 7")
    g("s_lshr_b32 s11, s2, 3")
    g("s_and_b32 s12, s11, 1")
    g("s_lshl_b32 s10, s10, 1")
    g("s_add_u32 s10, s10, s12")
    g("s_lshr_b32 s11, s11, 1")
    g("v_lshrrev_b32 v1, 6, v0")
    g("v_and_b32 v2, 63, v0")
    g("s_nop 0")
    g("v_readfirstlane_b32 s12, v1")
    g("v_lshrrev_b32 v3, 2, v2")
    g("s_movk_i32 s13, 1280")
    g("v_mul_lo_u32 v3, v3, s13")
    g("v_lshrrev_b32 v4, 4, v2")
    g("v_and_b32 v5, 3, v2")
    g("v_xor_b32 v6, v5, v4")
    g("v_lshl_add_u32 v3, v6, 4, v3")
    g("s_mul_i32 s14, s12, 40960")
    g("v_add_u32 v3, s14, v3")
    g("s_movk_i32 s13, 3840")
    g("v_mul_lo_u32 v7, v4, s13")
    g("v_bfe_u32 v6, v2, 2, 2")
    g("v_xor_b32 v6, v6, v4")
    g("v_lshl_add_u32 v7, v6, 6, v7")
    g("v_lshl_add_u32 v7, v5, 4, v7")
    g("s_mul_i32 s14, s12, 30720")
    g("v_add_u32 v7, s14, v7")
    g("s_lshr_b32 s15, s12, 1")
    g("s_and_b32 s16, s12, 1")
    g("v_and_b32 v8, 31, v2")
    g("v_lshrrev_b32 v9, 5, v2")
    g("v_bfe_u32 v10, v8, 2, 2")
    g("v_xor_b32 v11, v9, v10")
    g("v_xor_b32 v12, 2, v11")
    g("s_lshl_b32 s17, s15, 12")
    g("v_lshl_add_u32 v13, v8, 6, s17")
    g("v_lshl_add_u32 v11, v11, 4, v13")
    g("v_lshl_add_u32 v12, v12, 4, v13")
    g("v_bfe_u32 v13, v2, 2, 2")
    g("v_lshl_add_u32 v14, v9, 3, v13")
    g("v_lshlrev_b32 v14, 8, v14")
    g("v_and_b32 v15, 1, v4")
    g("v_lshl_add_u32 v14, v15, 5, v14")
    g("v_lshl_add_u32 v14, v5, 3, v14")
    g("v_add_u32 v14, 8192, v14")
    g("s_lshl_b32 s17, s16, 1")
    g("v_xor_b32 v15, s17, v13")
    g("v_xor_b32 v16, 1, v15")
    g("v_lshl_add_u32 v15, v15, 6, v14")
    g("v_lshl_add_u32 v16, v16, 6, v14")
    XB = [11, 12]
    WB = [15, 16]
    HI = 49152
    for i, b in enumerate(XB + WB):
        g(f"v_add_u32 v{17+i}, {HI}, v{b}")
    XBH = [17, 18]
    WBH = [19, 20]
    g("s_waitcnt lgkmcnt(0)")
    make_srd(g, 20, 4, 0, SZ_26)
    make_srd(g, 24, 6, 0, 640 * 3840)
    g("s_mul_i32 s28, s10, 163840")
    g("s_add_u32 s29, s28, 20480")
    g("s_lshl_b32 s30, s11, 8")
    g("s_add_u32 s31, s30, 15360")
    g("s_lshl_b32 s32, s12, 11")

    def issue_dma(it):
        st = it % NS
        base = st * G1_STAGE
        for j, (off, vo, srd, so) in enumerate([(0, 3, 20, 28), (1024, 3, 20, 29), (8192, 7, 24, 30), (9216, 7, 24, 31)]):
            g(f"s_add_u32 m0, s32, {base+off}")
            g("s_nop 0")
            g(f"buffer_load_dwordx4 v{vo}, s[{srd}:{srd+3}], s{so} offen lds")
        g("s_add_u32 s28, s28, 64")
        g("s_add_u32 s29, s29, 64")
        g("s_add_u32 s30, s30, 122880")
        g("s_add_u32 s31, s31, 122880")

    for it in range(NS - 1):
        issue_dma(it)

    ACC = 32
    FR = 96

    def reads(it, ks, b):
        st = it % NS
        base = st * G1_STAGE
        hi = base >= HI
        xb = (XBH if hi else XB)[ks]
        off0 = base - (HI if hi else 0)
        for mt in range(2):
            g(f"ds_read_b128 {vr(FR+16*b+4*mt,4)}, v{xb} offset:{off0+2048*mt}")
        for nt in range(2):
            wb = (WBH if hi else WB)[nt]
            for half in range(2):
                g(f"ds_read_b64_tr_b16 {vr(FR+16*b+8+4*nt+2*half,2)}, v{wb} offset:{off0+4096*ks+1024*half}")

    def mfmas(b, orient, first):
        for mt in range(2):
            for nt in range(2):
                acc = vr(ACC + 16 * (2 * mt + nt), 16)
                xf = vr(FR + 16 * b + 4 * mt, 4)
                wf = vr(FR + 16 * b + 8 + 4 * nt, 4)
                c = "0" if first else acc
                if orient == "qk":
                    g(f"v_mfma_f32_32x32x16_bf16 {acc}, {wf}, {xf}, {c}")
                else:
                    g(f"v_mfma_f32_32x32x16_bf16 {acc}, {xf}, {wf}, {c}")

    lv = g.newlabel("g1v")
    g("s_cmp_ge_u32 s11, 10")
    g(f"s_cbranch_scc1 {lv}")
    for orient in ("qk", "v"):
        if orient == "v":
            g.label(lv)
        for it in range(NIT):
            n = 4 * (min(it + NS - 2, NIT - 1) - it)
            g(f"s_waitcnt vmcnt({n}) lgkmcnt(0)")
            g("s_barrier")
            if it + NS - 1 < NIT:
                issue_dma(it + NS - 1)
            reads(it, 0, 0)
            if it > 0:
                mfmas(1, orient, False)
            reads(it, 1, 1)
            g("s_waitcnt lgkmcnt(6)")
            mfmas(0, orient, it == 0)
        g("s_waitcnt lgkmcnt(0)")
        mfmas(1, orient, False)
        g.nop(16)
        if orient == "qk":
            make_srd(g, 36, 8, WS_QK4, SZ_QK4)
            g("v_lshlrev_b32 v21, 14, v9")
            g("v_lshl_add_u32 v21, v8, 3, v21")
            g("s_lshl_b32 s40, s16, 18")
            g("s_lshl_b32 s41, s15, 9")
            g("s_add_u32 s40, s40, s41")
            g("v_add_u32 v21, s40, v21")
            g("s_lshl_b32 s40, s11, 19")
            g("s_lshl_b32 s41, s10, 10")
            g("s_add_u32 s40, s40, s41")
            k = 0
            for nt in range(2):
                for a in range(4):
                    g(f"s_add_u32 s41, s40, {(8*nt+2*a)*16384}")
                    for mt in range(2):
                        acc = ACC + 16 * (2 * mt + nt) + 4 * a
                        t = FR + 2 * (k % 8)
                        k += 1
                        g(f"v_cvt_pk_bf16_f32 v{t}, v{acc}, v{acc+1}")
                        g(f"v_cvt_pk_bf16_f32 v{t+1}, v{acc+2}, v{acc+3}")
                        g(f"buffer_store_dwordx2 {vr(t,2)}, v21, s[36:39], s41 offen offset:{256*mt}")
        else:
            make_srd(g, 36, 8, WS_VG, SZ_26)
            g("v_lshlrev_b32 v21, 5, v8")
            g("v_lshl_add_u32 v21, v9, 4, v21")
            g("s_lshl_b32 s40, s16, 11")
            g("s_mul_i32 s41, s15, 81920")
            g("s_add_u32 s40, s40, s41")
            g("v_add_u32 v21, s40, v21")
            g("s_mul_i32 s40, s10, 163840")
            g("s_sub_u32 s41, s11, 10")
            g("s_lshl_b32 s41, s41, 12")
            g("s_add_u32 s40, s40, s41")
            k = 0
            for mt in range(2):
                for ap in range(2):
                    g(f"s_add_u32 s41, s40, {(2*mt+ap)*20480}")
                    for nt in range(2):
                        acc = ACC + 16 * (2 * mt + nt) + 8 * ap
                        t = FR + 4 * (k % 4)
                        k += 1
                        for e in range(4):
                            g(f"v_cvt_pk_bf16_f32 v{t+e}, v{acc+2*e}, v{acc+2*e+1}")
                        g(f"buffer_store_dwordx4 {vr(t,4)}, v21, s[36:39], s41 offen offset:{1024*nt}")
        g("s_endpgm")


def gen_k1(g):
    name = "k1_kernel"
    kernel_begin(g, name)
    la1 = g.newlabel("a1")
    lend = g.newlabel("end")
    g("s_cmp_ge_u32 s2, 240")
    g(f"s_cbranch_scc1 {la1}")
    gen_gemm1(g)
    g.label(la1)
    g("s_cmp_ge_u32 s2, 320")
    g(f"s_cbranch_scc1 {lend}")
    g("v_lshrrev_b32 v1, 6, v0")
    g("s_sub_u32 s3, s2, 240")
    g("s_lshl_b32 s3, s3, 2")
    g("v_readfirstlane_b32 s19, v1")
    g("s_nop 3")
    g("s_add_u32 s3, s3, s19")
    gen_a1(g, "s3")
    g.label(lend)
    g("s_endpgm")
    return name


CV_COPY = 4160
CV_X = 4 * CV_COPY
CV_CH = 21248
N_CONV_WG = 320


def gen_conv(g):
    g(f"s_load_dwordx4 s[4:7], s[0:1], {KA['ssmk']}")
    g(f"s_load_dwordx2 s[8:9], s[0:1], {KA['ws']}")
    g("v_lshrrev_b32 v1, 6, v0")
    g("v_and_b32 v2, 63, v0")
    g("s_nop 0")
    g("v_readfirstlane_b32 s12, v1")
    g("v_and_b32 v3, 127, v0")
    g("s_nop 1")
    g("s_lshr_b32 s13, s12, 1")
    g("s_and_b32 s14, s12, 1")
    g("s_lshl_b32 s15, s2, 1")
    g("s_add_u32 s15, s15, s13")
    g("s_lshl_b32 s16, s15, 12")
    g(f"s_mul_i32 s17, s13, {CV_CH}")
    g("v_lshlrev_b32 v4, 4, v3")
    g("v_add_u32 v5, s17, v4")
    g("s_waitcnt lgkmcnt(0)")
    g("s_lshl_b32 s18, s15, 1")
    g("s_and_b32 s18, s18, 0xfffffffc")
    g("s_load_dword s19, s[6:7], s18")
    make_srd(g, 20, 4, 0, SZ_26)
    make_srd(g, 24, 8, WS_XR, SZ_26)
    make_srd(g, 28, 8, WS_Y2T, SZ_26)
    H = 8
    X = 32
    for cc in range(2):
        for j in range(3):
            g(f"buffer_load_dwordx4 {vr(H+12*cc+4*j,4)}, v4, s[20:23], s16 offen offset:{2048*cc+4*j}")
    for cc in range(2):
        g(f"buffer_load_dwordx4 {vr(X+4*cc,4)}, v4, s[24:27], s16 offen offset:{2048*cc}")
    g("v_mov_b32 v6, 0")
    g("buffer_load_dwordx2 v[40:41], v6, s[20:23], s16 offen")
    for i in range(4):
        g(f"v_mov_b32 v{44+i}, 0")
    g("v_cmp_gt_u32 vcc, 30, v3")
    g("s_and_saveexec_b64 s[32:33], vcc")
    g(f"ds_write_b128 v5, v[44:47] offset:{CV_X+4096}")
    g("s_mov_b64 exec, s[32:33]")
    g("s_waitcnt vmcnt(0)")
    T = 48
    for cc in range(2):
        A, B, C = H + 12 * cc, H + 12 * cc + 4, H + 12 * cc + 8
        for j in range(4):
            g(f"v_alignbyte_b32 v{T+8*cc+j}, v{B+j}, v{A+j}, 2")
        for j in range(4):
            g(f"v_alignbyte_b32 v{T+8*cc+4+j}, v{C+j}, v{B+j}, 2")
        o = 32 + 2048 * cc
        g(f"ds_write_b128 v5, {vr(A,4)} offset:{0*CV_COPY+o}")
        g(f"ds_write_b128 v5, {vr(T+8*cc,4)} offset:{1*CV_COPY+o}")
        g(f"ds_write_b128 v5, {vr(B,4)} offset:{2*CV_COPY+o}")
        g(f"ds_write_b128 v5, {vr(T+8*cc+4,4)} offset:{3*CV_COPY+o}")
        g(f"ds_write_b128 v5, {vr(X+4*cc,4)} offset:{CV_X+2048*cc}")
    g("v_cmp_eq_u32 vcc, 0, v3")
    g("s_and_saveexec_b64 s[32:33], vcc")
    g("v_lshlrev_b32 v64, 16, v40")
    g("v_alignbyte_b32 v65, v41, v40, 2")
    for sg in range(4):
        g(f"ds_write_b128 v5, v[44:47] offset:{sg*CV_COPY}")
    g(f"ds_write_b128 v5, v[44:47] offset:{0*CV_COPY+16}")
    g("v_mov_b32 v66, 0")
    g("v_mov_b32 v67, 0")
    g("v_mov_b32 v68, 0")
    g("v_mov_b32 v69, v64")
    g(f"ds_write_b128 v5, v[66:69] offset:{1*CV_COPY+16}")
    g("v_mov_b32 v70, 0")
    g("v_mov_b32 v71, 0")
    g("v_mov_b32 v72, 0")
    g("v_mov_b32 v73, v40")
    g(f"ds_write_b128 v5, v[70:73] offset:{2*CV_COPY+16}")
    g("v_mov_b32 v74, 0")
    g("v_mov_b32 v75, 0")
    g("v_mov_b32 v76, v64")
    g("v_mov_b32 v77, v65")
    g(f"ds_write_b128 v5, v[74:77] offset:{3*CV_COPY+16}")
    g("s_mov_b64 exec, s[32:33]")
    g("v_and_b32 v6, 15, v2")
    g("v_lshrrev_b32 v7, 4, v2")
    g("v_add_u32 v8, 1, v6")
    g("v_and_b32 v9, 3, v8")
    g(f"s_movk_i32 s34, {CV_COPY}")
    g("v_mul_lo_u32 v9, v9, s34")
    g("v_lshrrev_b32 v8, 2, v8")
    g("v_lshl_add_u32 v9, v8, 3, v9")
    g("v_lshl_add_u32 v9, v7, 4, v9")
    g("s_lshl_b32 s35, s14, 8")
    g("s_add_u32 s35, s35, s17")
    g("v_add_u32 v9, s35, v9")
    g("v_lshlrev_b32 v10, 5, v6")
    g(f"v_sub_u32 v10, {CV_X+4064-3584}, v10")
    g("v_lshl_add_u32 v10, v7, 4, v10")
    g("v_add_u32 v10, s35, v10")
    g("s_waitcnt lgkmcnt(0)")
    g("s_barrier")
    ACC = 16
    FR = 48

    def reads(rp, b):
        for mu in range(8):
            g(f"ds_read_b64 {vr(FR+64*b+4*mu,2)}, v9 offset:{64*(8*mu+rp)}")
            g(f"ds_read_b64 {vr(FR+64*b+4*mu+2,2)}, v9 offset:{64*(8*mu+rp)+8}")
        for tau in range(8):
            g(f"ds_read_b128 {vr(FR+64*b+32+4*tau,4)}, v10 offset:{64*(56-8*tau+rp)}")

    reads(0, 0)
    for rp in range(4):
        b = rp % 2
        g("s_waitcnt lgkmcnt(0)")
        if rp < 3:
            reads(rp + 1, 1 - b)
        for mu in range(8):
            for t in range(mu, 8):
                acc = vr(ACC + 4 * t, 4)
                c = "0" if (rp == 0 and mu == 0) else acc
                g(f"v_mfma_f32_16x16x32_bf16 {acc}, {vr(FR+64*b+4*mu,4)}, {vr(FR+64*b+32+4*(t-mu),4)}, {c}")
    g("s_barrier")
    g("v_lshlrev_b32 v11, 4, v2")
    g("v_add_u32 v11, s17, v11")
    g("s_lshl_b32 s36, s14, 12")
    g("v_add_u32 v12, s36, v11")
    g("s_xor_b32 s36, s36, 4096")
    g("v_add_u32 v13, s36, v11")
    lw1 = g.newlabel("cvw1")
    lj = g.newlabel("cvj")
    g("s_cmp_eq_u32 s14, 1")
    g(f"s_cbranch_scc1 {lw1}")
    g.nop(4)
    for t in range(4):
        g(f"ds_write_b128 v12, {vr(ACC+4*(4+t),4)} offset:{1024*t}")
    g(f"s_branch {lj}")
    g.label(lw1)
    g.nop(4)
    for t in range(4):
        g(f"ds_write_b128 v12, {vr(ACC+4*t,4)} offset:{1024*t}")
    for i in range(16):
        g(f"v_mov_b32 v{ACC+i}, v{ACC+16+i}")
    g.label(lj)
    g("s_waitcnt lgkmcnt(0)")
    g("s_barrier")
    P = 48
    for t in range(4):
        g(f"ds_read_b128 {vr(P+4*t,4)}, v13 offset:{1024*t}")
    g("v_lshlrev_b32 v14, 5, v6")
    g("v_lshl_add_u32 v14, v7, 3, v14")
    g(f"v_sub_u32 v14, {CV_X+4088-1536}, v14")
    g("s_lshl_b32 s36, s14, 11")
    g("s_sub_u32 s36, s17, s36")
    g("v_add_u32 v14, s36, v14")
    KV = 64
    for t in range(4):
        g(f"ds_read_b64 {vr(KV+2*t,2)}, v14 offset:{512*(3-t)}")
    g("s_and_b32 s18, s15, 1")
    g("s_lshl_b32 s18, s18, 4")
    g("s_lshr_b32 s19, s19, s18")
    g("s_lshl_b32 s19, s19, 16")
    g("s_mov_b32 s37, 0xffff0000")
    g("v_lshlrev_b32 v15, 5, v6")
    g("v_lshl_add_u32 v15, v7, 3, v15")
    g("s_lshl_b32 s36, s14, 11")
    g("s_add_u32 s36, s36, s16")
    g("s_waitcnt lgkmcnt(0)")
    U = 72
    for t in range(4):
        a = ACC + 4 * t
        for r in range(4):
            g(f"v_add_f32 v{a+r}, v{a+r}, v{P+4*t+r}")
        g(f"v_and_b32 v{U+0}, s37, v{KV+2*t+1}")
        g(f"v_lshlrev_b32 v{U+1}, 16, v{KV+2*t+1}")
        g(f"v_and_b32 v{U+2}, s37, v{KV+2*t}")
        g(f"v_lshlrev_b32 v{U+3}, 16, v{KV+2*t}")
        for r in range(4):
            g(f"v_mul_f32 v{U+r}, s19, v{U+r}")
        for r in range(4):
            g(f"v_cvt_pk_bf16_f32 v{U+r}, 0, v{U+r}")
            g(f"v_cvt_pk_bf16_f32 v{a+r}, 0, v{a+r}")
        for r in range(4):
            g(f"v_add_f32 v{a+r}, v{a+r}, v{U+r}")
        g(f"v_cvt_pk_bf16_f32 v{a}, v{a}, v{a+1}")
        g(f"v_cvt_pk_bf16_f32 v{a+1}, v{a+2}, v{a+3}")
        g(f"buffer_store_dwordx2 {vr(a,2)}, v15, s[28:31], s36 offen offset:{512*t}")
    g("s_endpgm")


AT_K = 0
AT_V = 15360
AT_VG = 1008
AT_LDS = AT_V + 24 * AT_VG
NEG = 0xF149F2CA


def gen_attn(g):
    g(f"s_load_dwordx2 s[8:9], s[0:1], {KA['ws']}")
    g("s_and_b32 s10, s3, 7")
    g("s_lshr_b32 s11, s3, 7")
    g("s_lshl_b32 s11, s11, 3")
    g("s_add_u32 s10, s10, s11")
    g("s_bfe_u32 s11, s3, 0x40003")
    g("v_lshrrev_b32 v1, 6, v0")
    g("v_and_b32 v2, 63, v0")
    g("s_nop 0")
    g("v_readfirstlane_b32 s12, v1")
    g("s_lshl_b32 s13, s11, 7")
    g("s_sub_u32 s14, s13, 256")
    g("s_waitcnt lgkmcnt(0)")
    make_srd(g, 20, 8, WS_QK4, SZ_QK4)
    make_srd(g, 24, 8, WS_VG, SZ_26)
    make_srd(g, 28, 8, WS_O4, SZ_26)
    g("s_mul_i32 s15, s10, 5")
    g("s_add_u32 s16, s15, 160")
    g("s_lshl_b32 s16, s16, 14")
    g("s_lshl_b32 s17, s14, 3")
    g("s_add_u32 s16, s16, s17")
    g("v_lshlrev_b32 v3, 4, v0")
    ST = 16
    lskip = g.newlabel("atk")
    g("s_cmp_eq_u32 s12, 3")
    g(f"s_cbranch_scc1 {lskip}")
    for j in range(5):
        g(f"s_add_u32 s17, s16, {16384*j}")
        g(f"buffer_load_dwordx4 {vr(ST+4*j,4)}, v3, s[20:23], s17 offen")
    g.label(lskip)
    g("v_mul_u32_u24 v4, 0x667, v0")
    g("v_lshrrev_b32 v4, 16, v4")
    g("v_mul_u32_u24 v5, 40, v4")
    g("v_sub_u32 v5, v0, v5")
    g("s_ashr_i32 s17, s14, 4")
    g("v_add_u32 v6, s17, v4")
    g("s_movk_i32 s18, 20480")
    g("v_mul_lo_u32 v6, v6, s18")
    g("s_mul_i32 s18, s10, 640")
    g("v_lshl_add_u32 v6, v5, 4, v6")
    g("v_add_u32 v6, s18, v6")
    g(f"v_mul_u32_u24 v7, {AT_VG}, v4")
    g("v_lshrrev_b32 v8, 1, v5")
    g("v_mul_u32_u24 v8, 48, v8")
    g("v_add_u32 v7, v7, v8")
    g("v_and_b32 v8, 1, v5")
    g("v_lshl_add_u32 v7, v8, 4, v7")
    g("v_cmp_gt_u32 vcc, 240, v0")
    g("s_and_saveexec_b64 s[32:33], vcc")
    for it in range(4):
        if it:
            g(f"v_add_u32 v6, {6*20480}, v6")
        g(f"buffer_load_dwordx4 {vr(ST+20+4*it,4)}, v6, s[24:27], 0 offen")
    g("s_mov_b64 exec, s[32:33]")
    g("v_and_b32 v8, 31, v2")
    g("v_lshrrev_b32 v9, 5, v2")
    g("s_lshl_b32 s17, s12, 5")
    g("s_add_u32 s17, s17, s13")
    g("v_add_u32 v10, s17, v8")
    g("v_lshlrev_b32 v10, 3, v10")
    g("v_lshl_add_u32 v11, v9, 15, v10")
    g("s_lshl_b32 s18, s15, 14")
    QF = 56
    g(f"buffer_load_dwordx2 {vr(QF,2)}, v11, s[20:23], s18 offen")
    g("s_add_u32 s19, s18, 16384")
    g(f"buffer_load_dwordx2 {vr(QF+2,2)}, v11, s[20:23], s19 offen")
    g("s_add_u32 s19, s18, 65536")
    g(f"buffer_load_dwordx2 {vr(QF+4,2)}, v10, s[20:23], s19 offen")
    g("v_lshrrev_b32 v12, 1, v0")
    g(f"v_mul_u32_u24 v12, {AT_VG}, v12")
    g("v_and_b32 v13, 1, v0")
    g("v_lshl_add_u32 v12, v13, 4, v12")
    for i in range(4):
        g(f"v_mov_b32 v{64+i}, 0x3f803f80")
    g("v_cmp_gt_u32 vcc, 48, v0")
    g("s_and_saveexec_b64 s[32:33], vcc")
    g(f"ds_write_b128 v12, v[64:67] offset:{AT_V+960}")
    g("s_mov_b64 exec, s[32:33]")
    S = 64
    O = 208
    KF = 224
    VF = 240
    g("v_lshlrev_b32 v13, 2, v9")
    g("v_sub_u32 v13, v8, v13")
    for r in range(16):
        c = 8 * (r >> 2) + (r & 3)
        g(f"v_cmp_gt_i32 s[{40+2*r}:{41+2*r}], {c}, v13")
    g("s_lshl_b32 s17, s12, 8")
    g("v_lshl_add_u32 v14, v8, 3, s17")
    g("v_mul_u32_u24 v15, 6144, v9")
    g("v_add_u32 v15, v15, v14")
    g("v_min_u32 v52, 20, v8")
    g("v_cmp_lt_u32 vcc, 27, v8")
    g("v_mov_b32 v53, 4")
    g("s_nop 1")
    g("v_cndmask_b32 v52, v52, v53, vcc")
    g("v_mul_u32_u24 v52, 48, v52")
    g("v_lshl_add_u32 v52, v9, 4, v52")
    g(f"s_mul_i32 s17, s12, {2*AT_VG}")
    g(f"s_add_u32 s17, s17, {AT_V}")
    g("v_add_u32 v52, s17, v52")
    g("s_waitcnt vmcnt(3)")
    lskip = g.newlabel("atk")
    g("s_cmp_eq_u32 s12, 3")
    g(f"s_cbranch_scc1 {lskip}")
    for j in range(5):
        g(f"ds_write_b128 v3, {vr(ST+4*j,4)} offset:{AT_K+3072*j}")
    g.label(lskip)
    g("v_cmp_gt_u32 vcc, 240, v0")
    g("s_and_saveexec_b64 s[32:33], vcc")
    for it in range(4):
        g(f"ds_write_b128 v7, {vr(ST+20+4*it,4)} offset:{AT_V+6*AT_VG*it}")
    g("s_mov_b64 exec, s[32:33]")
    for b in range(2):
        g(f"v_mov_b32 v{KF+8*b+6}, 0")
        g(f"v_mov_b32 v{KF+8*b+7}, 0")
    g(f"v_mov_b32 v{QF+6}, 0")
    g(f"v_mov_b32 v{QF+7}, 0")
    g("v_cmp_eq_u32 s[34:35], 1, v9")
    g("s_waitcnt vmcnt(0)")
    g(f"v_cndmask_b32 v{QF+4}, v{QF+4}, 0, s[34:35]")
    g(f"v_cndmask_b32 v{QF+5}, v{QF+5}, 0, s[34:35]")
    g("s_waitcnt lgkmcnt(0)")
    g("s_barrier")

    def kreads(tau, b):
        g(f"ds_read_b64 {vr(KF+8*b,2)}, v15 offset:{256*tau}")
        g(f"ds_read_b64 {vr(KF+8*b+2,2)}, v15 offset:{256*tau+3072}")
        g(f"ds_read_b64 {vr(KF+8*b+4,2)}, v14 offset:{256*tau+4*3072}")

    kreads(0, 0)
    for tau in range(9):
        b = tau % 2
        if tau < 8:
            kreads(tau + 1, 1 - b)
            g("s_waitcnt lgkmcnt(3)")
        else:
            g("s_waitcnt lgkmcnt(0)")
        s = vr(S + 16 * tau, 16)
        g(f"v_mfma_f32_32x32x16_bf16 {s}, {vr(KF+8*b,4)}, {vr(QF,4)}, 0")
        g(f"v_mfma_f32_32x32x16_bf16 {s}, {vr(KF+8*b+4,4)}, {vr(QF+4,4)}, {s}")
    g(f"ds_read_b128 {vr(VF,4)}, v52 offset:0")
    g(f"ds_read_b128 {vr(VF+4,4)}, v52 offset:{AT_VG}")
    g(f"v_mov_b32 v53, {NEG:#x}")
    for r in range(16):
        g(f"v_cndmask_b32 v{S+r}, v53, v{S+r}, s[{40+2*r}:{41+2*r}]")
    g.nop(4)
    g("s_lshl_b32 s17, s12, 5")
    g("s_add_u32 s17, s17, s13")
    lok = g.newlabel("atok")
    g("s_cmp_ge_u32 s17, 256")
    g(f"s_cbranch_scc1 {lok}")
    for tau in range(8):
        for r in range(16):
            g(f"v_mov_b32 v{S+16*tau+r}, v53")
        if tau < 7:
            g(f"s_cmp_ge_u32 s17, {256-32*(tau+1)}")
            g(f"s_cbranch_scc1 {lok}")
    g.label(lok)
    for r in range(16):
        g(f"v_cndmask_b32 v{S+128+r}, v{S+128+r}, v53, s[{40+2*r}:{41+2*r}]")
    M = 54
    g(f"v_max3_f32 v{M}, v{S}, v{S+1}, v{S+2}")
    g(f"v_max3_f32 v{M+1}, v{S+3}, v{S+4}, v{S+5}")
    i = 6
    k = 0
    while i < 144:
        g(f"v_max3_f32 v{M+k}, v{M+k}, v{S+i}, v{S+i+1}")
        k ^= 1
        i += 2
    g(f"v_max_f32 v{M}, v{M}, v{M+1}")
    g(f"v_mov_b32 v{M+1}, v{M}")
    g("s_nop 1")
    g(f"v_permlane32_swap_b32 v{M}, v{M+1}")
    g("s_nop 1")
    g(f"v_max_f32 v{M}, v{M}, v{M+1}")
    import struct
    c = (20 ** -0.5) * 1.4426950408889634
    cb = struct.unpack("<I", struct.pack("<f", c))[0]
    g(f"s_mov_b32 s36, {cb:#x}")
    g(f"v_mul_f32 v{M}, s36, v{M}")
    nv = 2
    for tau in range(9):
        sb = S + 16 * tau
        for r in range(16):
            g(f"v_fma_f32 v{sb+r}, v{sb+r}, s36, -v{M}")
        for r in range(16):
            g(f"v_exp_f32 v{sb+r}, v{sb+r}")
        g("s_nop 0")
        for j in range(8):
            g(f"v_cvt_pk_bf16_f32 v{sb+j}, v{sb+2*j}, v{sb+2*j+1}")
        for kp in range(2):
            idx = 2 * tau + kp
            if idx + 2 < 18:
                g(f"ds_read_b128 {vr(VF+4*((idx+2)%3),4)}, v52 offset:{AT_VG*(idx+2)}")
                g("s_waitcnt lgkmcnt(2)")
            elif idx + 1 < 18:
                g("s_waitcnt lgkmcnt(1)")
            else:
                g("s_waitcnt lgkmcnt(0)")
            cc = "0" if idx == 0 else vr(O, 16)
            if kp == 0:
                g("s_nop 0")
            g(f"v_mfma_f32_32x32x16_bf16 {vr(O,16)}, {vr(VF+4*(idx%3),4)}, {vr(sb+4*kp,4)}, {cc}")
    g.nop(14)
    g(f"v_cndmask_b32 v{M}, v{O+12}, v{O+8}, s[34:35]")
    g(f"v_rcp_f32 v{M}, v{M}")
    g("v_lshl_add_u32 v11, v9, 14, v10")
    for r in range(12):
        g(f"v_mul_f32 v{O+r}, v{O+r}, v{M}")
    for a in range(3):
        g(f"v_cvt_pk_bf16_f32 v{S+2*a}, v{O+4*a}, v{O+4*a+1}")
        g(f"v_cvt_pk_bf16_f32 v{S+2*a+1}, v{O+4*a+2}, v{O+4*a+3}")
    for a in range(3):
        g(f"s_add_u32 s19, s18, {2*a*16384}")
        if a == 2:
            g("s_andn2_b64 exec, exec, s[34:35]")
        g(f"buffer_store_dwordx2 {vr(S+2*a,2)}, v11, s[28:31], s19 offen")
    g("s_endpgm")


def gen_k2(g):
    name = "k2_kernel"
    kernel_begin(g, name)
    lat = g.newlabel("attn")
    lend = g.newlabel("end")
    g(f"s_cmp_ge_u32 s2, {N_CONV_WG}")
    g(f"s_cbranch_scc1 {lat}")
    gen_conv(g)
    g.label(lat)
    g(f"s_cmp_ge_u32 s2, {N_CONV_WG+512}")
    g(f"s_cbranch_scc1 {lend}")
    g(f"s_sub_u32 s3, s2, {N_CONV_WG}")
    gen_attn(g)
    g.label(lend)
    g("s_endpgm")
    return name


G2_NS = 5
G2_STAGE = 12288


def gen_gemm2(g):
    NS = G2_NS
    NIT = 20
    g(f"s_load_dwordx4 s[4:7], s[0:1], {KA['wo']}")
    g(f"s_load_dwordx2 s[8:9], s[0:1], {KA['ws']}")
    g("s_and_b32 s10, s2, 7")
    g("s_lshr_b32 s11, s2, 3")
    g("s_and_b32 s12, s11, 1")
    g("s_lshl_b32 s10, s10, 1")
    g("s_add_u32 s10, s10, s12")
    g("s_lshr_b32 s11, s11, 1")
    g("v_lshrrev_b32 v1, 6, v0")
    g("v_and_b32 v2, 63, v0")
    g("s_nop 0")
    g("v_readfirstlane_b32 s12, v1")
    g("v_lshlrev_b32 v3, 4, v2")
    g("s_lshl_b32 s14, s12, 15")
    g("v_add_u32 v3, s14, v3")
    g("v_lshrrev_b32 v4, 3, v2")
    g("s_movk_i32 s13, 1280")
    g("v_mul_lo_u32 v7, v4, s13")
    g("v_bfe_u32 v5, v2, 2, 1")
    g("v_bfe_u32 v6, v2, 4, 1")
    g("v_xor_b32 v5, v5, v6")
    g("v_lshl_add_u32 v7, v5, 6, v7")
    g("v_and_b32 v5, 3, v2")
    g("v_lshl_add_u32 v7, v5, 4, v7")
    g("s_mul_i32 s14, s12, 10240")
    g("v_add_u32 v7, s14, v7")
    g("s_lshr_b32 s15, s12, 1")
    g("s_and_b32 s16, s12, 1")
    g("v_and_b32 v8, 31, v2")
    g("v_lshrrev_b32 v9, 5, v2")
    g("s_lshl_b32 s17, s15, 9")
    g("v_lshl_add_u32 v11, v8, 3, s17")
    g("v_lshl_add_u32 v11, v9, 11, v11")
    g("v_bfe_u32 v13, v2, 2, 2")
    g("v_lshl_add_u32 v14, v9, 3, v13")
    g("v_lshlrev_b32 v14, 7, v14")
    g("v_bfe_u32 v15, v2, 4, 1")
    g("v_lshl_add_u32 v14, v15, 5, v14")
    g("v_lshl_add_u32 v14, v5, 3, v14")
    g("v_add_u32 v14, 8192, v14")
    g("v_lshrrev_b32 v15, 1, v13")
    g("v_xor_b32 v15, s16, v15")
    g("v_lshl_add_u32 v15, v15, 6, v14")
    g("s_waitcnt lgkmcnt(0)")
    make_srd(g, 20, 8, WS_O4, SZ_26)
    make_srd(g, 24, 4, 0, 640 * 1280)
    g("s_lshl_b32 s28, s10, 10")
    g("s_add_u32 s29, s28, 16384")
    g("s_lshl_b32 s30, s11, 7")
    g("s_lshl_b32 s32, s12, 11")
    g("s_lshl_b32 s33, s12, 10")

    def issue_dma(it):
        base = (it % NS) * G2_STAGE
        for (sm, off, vo, srd, so) in [(32, 0, 3, 20, 28), (32, 1024, 3, 20, 29), (33, 8192, 7, 24, 30)]:
            g(f"s_add_u32 m0, s{sm}, {base+off}")
            g("s_nop 0")
            g(f"buffer_load_dwordx4 v{vo}, s[{srd}:{srd+3}], s{so} offen lds")
        g(f"s_add_u32 s28, s28, {8*16384}")
        g(f"s_add_u32 s29, s29, {8*16384}")
        g(f"s_add_u32 s30, s30, {32*1280}")

    for it in range(NS - 1):
        issue_dma(it)
    ACC = 32
    FR = 64

    def reads(it, ks, b):
        base = (it % NS) * G2_STAGE
        for mt in range(2):
            for a in range(2):
                g(f"ds_read_b64 {vr(FR+12*b+4*mt+2*a,2)}, v11 offset:{base+4096*ks+1024*a+256*mt}")
        for half in range(2):
            g(f"ds_read_b64_tr_b16 {vr(FR+12*b+8+2*half,2)}, v15 offset:{base+2048*ks+512*half}")

    def mfmas(b, first):
        for mt in range(2):
            acc = vr(ACC + 16 * mt, 16)
            c = "0" if first else acc
            g(f"v_mfma_f32_32x32x16_bf16 {acc}, {vr(FR+12*b+8,4)}, {vr(FR+12*b+4*mt,4)}, {c}")

    for it in range(NIT):
        n = 3 * (min(it + NS - 2, NIT - 1) - it)
        g(f"s_waitcnt vmcnt({n}) lgkmcnt(0)")
        g("s_barrier")
        if it + NS - 1 < NIT:
            issue_dma(it + NS - 1)
        reads(it, 0, 0)
        if it > 0:
            mfmas(1, False)
        reads(it, 1, 1)
        g("s_waitcnt lgkmcnt(6)")
        mfmas(0, it == 0)
    g("s_waitcnt lgkmcnt(0)")
    mfmas(1, False)
    g("s_barrier")
    g("s_mul_i32 s17, s15, 9216")
    g("s_lshl_b32 s18, s16, 6")
    g("s_add_u32 s17, s17, s18")
    g("v_mul_u32_u24 v16, 144, v8")
    g("v_lshl_add_u32 v16, v9, 3, v16")
    g("v_add_u32 v16, s17, v16")
    g.nop(10)
    k = 0
    for mt in range(2):
        for a in range(4):
            acc = ACC + 16 * mt + 4 * a
            t = FR + 2 * (k % 8)
            k += 1
            g(f"v_cvt_pk_bf16_f32 v{t}, v{acc}, v{acc+1}")
            g(f"v_cvt_pk_bf16_f32 v{t+1}, v{acc+2}, v{acc+3}")
            g(f"ds_write_b64 v16, {vr(t,2)} offset:{4608*mt+16*a}")
    make_srd(g, 36, 6, 0, 2 * SZ_26)
    g("v_lshrrev_b32 v17, 3, v0")
    g("v_and_b32 v18, 7, v0")
    g("v_mul_u32_u24 v19, 144, v17")
    g("v_lshl_add_u32 v19, v18, 4, v19")
    g("s_movk_i32 s13, 2560")
    g("v_mul_lo_u32 v20, v17, s13")
    g("v_lshl_add_u32 v20, v18, 4, v20")
    g("s_mul_i32 s40, s10, 327680")
    g("s_lshl_b32 s41, s11, 7")
    g("s_add_u32 s40, s40, s41")
    g("s_add_u32 s40, s40, 1280")
    g("s_waitcnt lgkmcnt(0)")
    g("s_barrier")
    for it in range(4):
        g(f"ds_read_b128 {vr(ACC+4*it,4)}, v19 offset:{4608*it}")
    for it in range(4):
        g(f"s_waitcnt lgkmcnt({3-it})")
        g(f"buffer_store_dwordx4 {vr(ACC+4*it,4)}, v20, s[36:39], s40 offen")
        g(f"s_add_u32 s40, s40, {32*2560}")
    g("s_endpgm")


def gen_k3(g):
    name = "k3_kernel"
    kernel_begin(g, name)
    la3 = g.newlabel("a3")
    lend = g.newlabel("end")
    g("s_cmp_ge_u32 s2, 160")
    g(f"s_cbranch_scc1 {la3}")
    gen_gemm2(g)
    g.label(la3)
    g("s_cmp_ge_u32 s2, 240")
    g(f"s_cbranch_scc1 {lend}")
    g("v_lshrrev_b32 v1, 6, v0")
    g("s_sub_u32 s3, s2, 160")
    g("s_lshl_b32 s3, s3, 2")
    g("v_readfirstlane_b32 s19, v1")
    g("s_nop 3")
    g("s_add_u32 s3, s3, s19")
    gen_a3(g, "s3")
    g.label(lend)
    g("s_endpgm")
    return name


def main(path):
    g = G()
    k2_lds = max(2 * CV_CH, AT_LDS)
    g.raw(f"; @launch kernel=k1_kernel grid=(320,1,1) block=(256,1,1) lds={G1_NS*G1_STAGE}")
    g.raw(f"; @launch kernel=k2_kernel grid=({N_CONV_WG+512},1,1) block=(256,1,1) lds={k2_lds}")
    g.raw(f"; @launch kernel=k3_kernel grid=(240,1,1) block=(256,1,1) lds={G2_NS*G2_STAGE}")
    g.raw('.amdgcn_target "amdgcn-amd-amdhsa--gfx950"')
    g.raw(".text")
    gen_k1(g)
    gen_k2(g)
    gen_k3(g)
    g.raw('.section .rodata,"a"')
    g.raw(".p2align 6")
    kernel_desc(g, "k1_kernel", 184)
    g.raw(".p2align 6")
    kernel_desc(g, "k2_kernel", 256)
    g.raw(".p2align 6")
    kernel_desc(g, "k3_kernel", 128)
    open(path, "w").write("\n".join(g.lines) + "\n")


if __name__ == "__main__":
    main(sys.argv[1] if len(sys.argv) > 1 else f"cdna_kernels/{NAME}.s")
```

```python
import sys

NAME = "concat_heads__ssm_conv_h3__sliding_block__prompt"

WS_XR = 0x000000
WS_QK4 = 0x280000
WS_VG = 0x780000
WS_O4 = 0xA00000
WS_Y2T = 0xC80000
SZ_26 = 2621440
SZ_QK4 = 5242880

KA = dict(q=0, k=8, v=16, shift=24, ssmk=32, ssmD=40, x=48, wqkv=56, wo=64, out=72, dbg=80, ws=88)


class G:
    def __init__(self):
        self.lines = []
        self.uid = 0

    def __call__(self, s):
        self.lines.append("    " + s)

    def label(self, name):
        self.lines.append(name + ":")

    def raw(self, s):
        self.lines.append(s)

    def newlabel(self, p="L"):
        self.uid += 1
        return f".{p}_{self.uid}"

    def nop(self, n):
        while n > 0:
            k = min(n, 16)
            self(f"s_nop {k-1}")
            n -= k


def vr(a, n=1):
    return f"v{a}" if n == 1 else f"v[{a}:{a+n-1}]"


def sr(a, n=1):
    return f"s{a}" if n == 1 else f"s[{a}:{a+n-1}]"


def make_srd(g, d, ptr, off, size):
    if off:
        g(f"s_add_u32 s{d}, s{ptr}, {off:#x}")
        g(f"s_addc_u32 s{d+1}, s{ptr+1}, 0")
    else:
        g(f"s_mov_b32 s{d}, s{ptr}")
        g(f"s_mov_b32 s{d+1}, s{ptr+1}")
    g(f"s_mov_b32 s{d+2}, {size:#x}")
    g(f"s_mov_b32 s{d+3}, 0x00020000")


STAMPS = False
WS_ST = 0x1000000


def stamp(g, idx):
    if not STAMPS:
        return
    g("s_memrealtime s[98:99]")
    g("s_waitcnt lgkmcnt(0)")
    g(f"s_mov_b32 s{80+idx}, s98")


def stamp_flush(g, kidx, n, wsptr):
    if not STAMPS:
        return
    stamp(g, n)
    n += 1
    g("s_mov_b64 exec, -1")
    g(f"s_add_u32 s96, s{wsptr}, {WS_ST + kidx*0x40000:#x}")
    g(f"s_addc_u32 s97, s{wsptr+1}, 0")
    g("s_mov_b32 s98, 0x40000")
    g("s_mov_b32 s99, 0x00020000")
    g("v_cmp_eq_u32 vcc, 0, v0")
    g("s_and_saveexec_b64 s[94:95], vcc")
    g("s_lshl_b32 s94, s2, 6")
    g("v_mov_b32 v1, s94")
    for i in range(n):
        g(f"v_mov_b32 v2, s{80+i}")
        g(f"buffer_store_dword v2, v1, s[96:99], 0 offen offset:{4*i}")


def kernel_begin(g, name):
    g.raw(f".globl {name}")
    g.raw(".p2align 8")
    g.raw(f".type {name},@function")
    g.label(name)


def kernel_desc(g, name, vgpr, sgpr=102):
    acc = (vgpr + 3) // 4 * 4
    g.raw(f".amdhsa_kernel {name}")
    g.raw(f"  .amdhsa_next_free_vgpr {vgpr}")
    g.raw(f"  .amdhsa_next_free_sgpr {sgpr}")
    g.raw(f"  .amdhsa_accum_offset {acc}")
    g.raw("  .amdhsa_group_segment_fixed_size 0")
    g.raw("  .amdhsa_kernarg_size 96")
    g.raw("  .amdhsa_user_sgpr_count 2")
    g.raw("  .amdhsa_user_sgpr_kernarg_segment_ptr 1")
    g.raw("  .amdhsa_system_sgpr_workgroup_id_x 1")
    g.raw("  .amdhsa_float_denorm_mode_32 3")
    g.raw(".end_amdhsa_kernel")


A1_RL = 4


def gen_a1(g, s_unit, tail=None):
    RL = A1_RL
    NR = RL + 3
    stamp(g, 0)
    g(f"s_load_dwordx4 s[4:7], s[0:1], {KA['k']}")
    g(f"s_load_dwordx2 s[8:9], s[0:1], {KA['shift']}")
    g(f"s_load_dwordx2 s[10:11], s[0:1], {KA['ws']}")
    g(f"s_mul_hi_u32 s12, {s_unit}, 0x1999999a")
    g(f"s_mul_i32 s13, s12, 10")
    g(f"s_sub_u32 s13, {s_unit}, s13")
    g("v_and_b32 v1, 63, v0")
    g("v_and_b32 v2, 7, v1")
    g("v_lshrrev_b32 v3, 3, v1")
    g(f"s_mul_i32 s14, s12, {8*RL}")
    g(f"v_mul_u32_u24 v4, {RL}, v3")
    g("v_add_u32 v4, s14, v4")
    g("s_lshl_b32 s15, s13, 6")
    g("v_lshl_add_u32 v5, v2, 3, s15")
    g("s_movk_i32 s16, 1280")
    g("v_mul_lo_u32 v6, v4, s16")
    g("v_lshl_add_u32 v6, v5, 1, v6")
    g("v_add_u32 v7, 5120, v6")
    g("v_subrev_u32 v8, 3840, v6")
    g("v_cmp_eq_u32 vcc, 0, v4")
    g("v_mov_b32 v9, 0x80000000")
    g("s_nop 1")
    g("v_cndmask_b32 v8, v8, v9, vcc")
    g("v_lshlrev_b32 v9, 3, v5")
    g("v_lshlrev_b32 v10, 12, v5")
    g(f"v_sub_u32 v11, {2048-RL}, v4")
    g("v_lshl_add_u32 v10, v11, 1, v10")
    g("s_waitcnt lgkmcnt(0)")
    stamp(g, 1)
    make_srd(g, 20, 4, 0, SZ_26)
    make_srd(g, 24, 6, 0, SZ_26)
    make_srd(g, 28, 8, 0, 5120)
    make_srd(g, 32, 10, WS_XR, SZ_26)
    KR = 16
    VR = KR + 4 * NR
    WR = VR + 4 * RL
    for r in range(3):
        g(f"buffer_load_dwordx4 {vr(KR+4*r,4)}, v8, s[20:23], 0 offen offset:{1280*r}")
    for r in range(RL):
        vo = "v6" if r < 4 else "v7"
        g(f"buffer_load_dwordx4 {vr(KR+12+4*r,4)}, {vo}, s[20:23], 0 offen offset:{1280*(r%4)}")
    for j in range(4):
        g(f"buffer_load_dwordx4 {vr(WR+4*j,4)}, v9, s[28:31], 0 offen offset:{16*j}")
    for r in range(RL):
        vo = "v6" if r < 4 else "v7"
        g(f"buffer_load_dwordx4 {vr(VR+4*r,4)}, {vo}, s[24:27], 0 offen offset:{1280*(r%4)}")
    g("s_mov_b32 s17, 0xffff0000")
    g("s_waitcnt vmcnt(0)")
    stamp(g, 2)
    KF = WR + 16
    WF = KF + 12
    T = WF + 4
    OUT = T + 12
    PK = OUT + 8
    NP = RL // 2
    for ch in range(8):
        j, hi = ch // 2, ch % 2
        for r in range(NR):
            src = KR + 4 * r + j
            if hi:
                g(f"v_and_b32 v{KF+r}, s17, v{src}")
            else:
                g(f"v_lshlrev_b32 v{KF+r}, 16, v{src}")
        g(f"v_lshlrev_b32 v{WF+0}, 16, v{WR+2*ch}")
        g(f"v_and_b32 v{WF+1}, s17, v{WR+2*ch}")
        g(f"v_lshlrev_b32 v{WF+2}, 16, v{WR+2*ch+1}")
        g(f"v_and_b32 v{WF+3}, s17, v{WR+2*ch+1}")
        for s0 in range(0, RL, 2):
            for u in range(2):
                s = s0 + u
                t = T + 6 * u
                g(f"v_mul_f32 v{t}, v{KF+s}, v{WF+3}")
                g(f"v_mul_f32 v{t+1}, v{KF+s+1}, v{WF+2}")
                g(f"v_mul_f32 v{t+2}, v{KF+s+2}, v{WF+1}")
                g(f"v_mul_f32 v{t+3}, v{KF+s+3}, v{WF+0}")
                src = VR + 4 * s + j
                if hi:
                    g(f"v_and_b32 v{t+4}, s17, v{src}")
                else:
                    g(f"v_lshlrev_b32 v{t+4}, 16, v{src}")
            for u in range(2):
                t = T + 6 * u
                for q in range(4):
                    g(f"v_cvt_pk_bf16_f32 v{t+q}, 0, v{t+q}")
            for q in range(1, 4):
                for u in range(2):
                    t = T + 6 * u
                    g(f"v_add_f32 v{t}, v{t}, v{t+q}")
                for u in range(2):
                    t = T + 6 * u
                    g(f"v_cvt_pk_bf16_f32 v{t}, 0, v{t}")
            for u in range(2):
                t = T + 6 * u
                g(f"v_mul_f32 v{OUT+s0+u}, v{t}, v{t+4}")
        for e in range(NP):
            g(f"v_cvt_pk_bf16_f32 v{PK+NP*ch+e}, v{OUT+RL-1-2*e}, v{OUT+RL-2-2*e}")
    for ch in range(8):
        g(f"s_mov_b32 s18, {4096*ch}")
        g(f"buffer_store_dwordx{NP} {vr(PK+NP*ch,NP)}, v10, s[32:35], s18 offen")
    if tail:
        tail()
    stamp(g, 3)
    if STAMPS: g("s_waitcnt vmcnt(0)")
    stamp_flush(g, 0, 4, 10)
    g("s_endpgm")
    return PK + NP * 8


def gen_a3(g, s_unit):
    stamp(g, 0)
    g(f"s_load_dwordx2 s[4:5], s[0:1], {KA['q']}")
    g(f"s_load_dwordx2 s[6:7], s[0:1], {KA['out']}")
    g(f"s_load_dwordx2 s[10:11], s[0:1], {KA['ws']}")
    g(f"s_mul_hi_u32 s12, {s_unit}, 0x1999999a")
    g(f"s_mul_i32 s13, s12, 10")
    g(f"s_sub_u32 s13, {s_unit}, s13")
    g("v_and_b32 v1, 63, v0")
    g("v_and_b32 v2, 7, v1")
    g("v_lshrrev_b32 v3, 3, v1")
    g("s_lshl_b32 s14, s12, 6")
    g("v_lshl_add_u32 v4, v3, 3, s14")
    g("s_lshl_b32 s15, s13, 6")
    g("v_lshl_add_u32 v5, v2, 3, s15")
    g("s_movk_i32 s16, 1280")
    g("v_mul_lo_u32 v6, v4, s16")
    g("v_lshl_add_u32 v7, v5, 1, v6")
    g("v_add_u32 v8, 5120, v7")
    g("v_lshlrev_b32 v6, 1, v6")
    g("v_lshl_add_u32 v9, v5, 1, v6")
    g("v_lshlrev_b32 v10, 12, v5")
    g("v_lshl_add_u32 v10, v4, 1, v10")
    g("s_waitcnt lgkmcnt(0)")
    stamp(g, 1)
    make_srd(g, 20, 4, 0, SZ_26)
    make_srd(g, 24, 6, 0, 2 * SZ_26)
    make_srd(g, 28, 10, WS_Y2T, SZ_26)
    QR = 16
    YR = 48
    for r in range(8):
        vo = "v7" if r < 4 else "v8"
        g(f"buffer_load_dwordx4 {vr(QR+4*r,4)}, {vo}, s[20:23], 0 offen offset:{1280*(r%4)}")
    for ch in range(8):
        g(f"s_mov_b32 s18, {4096*ch}")
        g(f"buffer_load_dwordx4 {vr(YR+4*ch,4)}, v10, s[28:31], s18 offen")
    g("s_mov_b32 s17, 0xffff0000")
    g("s_waitcnt vmcnt(0)")
    stamp(g, 2)
    T = 80
    PK = 96
    for s in range(8):
        for j in range(4):
            t = T + 4 * (j % 2)
            g(f"v_lshlrev_b32 v{t}, 16, v{QR+4*s+j}")
            g(f"v_and_b32 v{t+1}, s17, v{QR+4*s+j}")
            for u in range(2):
                src = YR + 4 * (2 * j + u) + s // 2
                if s % 2:
                    g(f"v_and_b32 v{t+2+u}, s17, v{src}")
                else:
                    g(f"v_lshlrev_b32 v{t+2+u}, 16, v{src}")
            g(f"v_mul_f32 v{t}, v{t}, v{t+2}")
            g(f"v_mul_f32 v{t+1}, v{t+1}, v{t+3}")
            g(f"v_cvt_pk_bf16_f32 v{PK+4*s+j}, v{t}, v{t+1}")
    for s in range(8):
        g(f"s_mov_b32 s18, {2560*s}")
        g(f"buffer_store_dwordx4 {vr(PK+4*s,4)}, v9, s[24:27], s18 offen")
    stamp(g, 3)
    if STAMPS: g("s_waitcnt vmcnt(0)")
    stamp_flush(g, 2, 4, 10)
    g("s_endpgm")


G1_NS = 5
G1_STAGE = 16384


def gen_gemm1(g):
    NS = G1_NS
    NIT = 20
    stamp(g, 0)
    g(f"s_load_dwordx4 s[4:7], s[0:1], {KA['x']}")
    g(f"s_load_dwordx2 s[8:9], s[0:1], {KA['ws']}")
    g("s_and_b32 s12, s2, 3")
    g("s_bfe_u32 s13, s2, 0x10002")
    g("s_lshr_b32 s14, s2, 3")
    g("s_lshl_b32 s10, s12, 2")
    g("s_and_b32 s15, s14, 3")
    g("s_add_u32 s15, s10, s15")
    g("s_lshr_b32 s33, s14, 2")
    g("s_lshl_b32 s11, s13, 3")
    g("s_add_u32 s11, s11, s33")
    g("s_lshl_b32 s16, s13, 1")
    g("s_add_u32 s16, s16, s10")
    g("s_add_u32 s16, s16, s14")
    g("s_sub_u32 s16, s16, 28")
    g("s_cmp_ge_u32 s14, 28")
    g("s_cselect_b32 s10, s16, s15")
    g("s_cselect_b32 s11, 7, s11")
    g("v_lshrrev_b32 v1, 6, v0")
    g("v_and_b32 v2, 63, v0")
    g("s_nop 0")
    g("v_readfirstlane_b32 s12, v1")
    g("v_lshrrev_b32 v3, 2, v2")
    g("s_movk_i32 s13, 1280")
    g("v_mul_lo_u32 v3, v3, s13")
    g("v_lshrrev_b32 v4, 4, v2")
    g("v_and_b32 v5, 3, v2")
    g("v_xor_b32 v6, v5, v4")
    g("v_lshl_add_u32 v3, v6, 4, v3")
    g("s_mul_i32 s14, s12, 40960")
    g("v_add_u32 v3, s14, v3")
    g("s_movk_i32 s13, 3840")
    g("v_mul_lo_u32 v7, v4, s13")
    g("v_bfe_u32 v6, v2, 2, 2")
    g("v_xor_b32 v6, v6, v4")
    g("v_lshl_add_u32 v7, v6, 6, v7")
    g("v_lshl_add_u32 v7, v5, 4, v7")
    g("s_mul_i32 s14, s12, 30720")
    g("v_add_u32 v7, s14, v7")
    g("s_lshr_b32 s15, s12, 1")
    g("s_and_b32 s16, s12, 1")
    g("v_and_b32 v8, 31, v2")
    g("v_lshrrev_b32 v9, 5, v2")
    g("v_bfe_u32 v10, v8, 2, 2")
    g("v_xor_b32 v11, v9, v10")
    g("v_xor_b32 v12, 2, v11")
    g("s_lshl_b32 s17, s15, 12")
    g("v_lshl_add_u32 v13, v8, 6, s17")
    g("v_lshl_add_u32 v11, v11, 4, v13")
    g("v_lshl_add_u32 v12, v12, 4, v13")
    g("v_bfe_u32 v13, v2, 2, 2")
    g("v_lshl_add_u32 v14, v9, 3, v13")
    g("v_lshlrev_b32 v14, 8, v14")
    g("v_and_b32 v15, 1, v4")
    g("v_lshl_add_u32 v14, v15, 5, v14")
    g("v_lshl_add_u32 v14, v5, 3, v14")
    g("v_add_u32 v14, 8192, v14")
    g("s_lshl_b32 s17, s16, 1")
    g("v_xor_b32 v15, s17, v13")
    g("v_xor_b32 v16, 1, v15")
    g("v_lshl_add_u32 v15, v15, 6, v14")
    g("v_lshl_add_u32 v16, v16, 6, v14")
    XB = [11, 12]
    WB = [15, 16]
    HI = 49152
    for i, b in enumerate(XB + WB):
        g(f"v_add_u32 v{17+i}, {HI}, v{b}")
    XBH = [17, 18]
    WBH = [19, 20]
    g("s_waitcnt lgkmcnt(0)")
    stamp(g, 1)
    make_srd(g, 20, 4, 0, SZ_26)
    make_srd(g, 24, 6, 0, 640 * 3840)
    g("s_mul_i32 s28, s10, 163840")
    g("s_add_u32 s29, s28, 20480")
    g("s_lshl_b32 s30, s11, 8")
    g("s_add_u32 s31, s30, 15360")
    g("s_lshl_b32 s32, s12, 11")

    def dma_piece(it, j):
        base = (it % NS) * G1_STAGE
        off, vo, srd, so, inc = [(0, 3, 20, 28, 64), (1024, 3, 20, 29, 64), (8192, 7, 24, 30, 122880), (9216, 7, 24, 31, 122880)][j]
        g(f"s_add_u32 m0, s32, {base+off}")
        g("s_nop 0")
        g(f"buffer_load_dwordx4 v{vo}, s[{srd}:{srd+3}], s{so} offen lds")
        g(f"s_add_u32 s{so}, s{so}, {inc}")

    def issue_dma(it):
        for j in range(4):
            dma_piece(it, j)

    for it in range(NS - 1):
        issue_dma(it)

    ACC = 32
    FR = 96

    def reads(it, ks, b):
        st = it % NS
        base = st * G1_STAGE
        hi = base >= HI
        xb = (XBH if hi else XB)[ks]
        off0 = base - (HI if hi else 0)
        for mt in range(2):
            g(f"ds_read_b128 {vr(FR+16*b+4*mt,4)}, v{xb} offset:{off0+2048*mt}")
        for nt in range(2):
            wb = (WBH if hi else WB)[nt]
            for half in range(2):
                g(f"ds_read_b64_tr_b16 {vr(FR+16*b+8+4*nt+2*half,2)}, v{wb} offset:{off0+4096*ks+1024*half}")

    def mfmas(b, orient, first, hooks=None):
        for mt in range(2):
            for nt in range(2):
                if hooks and (2 * mt + nt) in hooks:
                    hooks[2 * mt + nt]()
                acc = vr(ACC + 16 * (2 * mt + nt), 16)
                xf = vr(FR + 16 * b + 4 * mt, 4)
                wf = vr(FR + 16 * b + 8 + 4 * nt, 4)
                c = "0" if first else acc
                if orient == "qk":
                    g(f"v_mfma_f32_32x32x16_bf16 {acc}, {wf}, {xf}, {c}")
                else:
                    g(f"v_mfma_f32_32x32x16_bf16 {acc}, {xf}, {wf}, {c}")

    lv = g.newlabel("g1v")
    g("s_cmp_ge_u32 s11, 10")
    g(f"s_cbranch_scc1 {lv}")
    for orient in ("qk", "v"):
        if orient == "v":
            g.label(lv)
        for it in range(NIT):
            n = 4 * (min(it + NS - 2, NIT - 1) - it)
            g(f"s_waitcnt vmcnt({n}) lgkmcnt(0)")
            g("s_barrier")
            if it in (0, 5, 10, 15):
                stamp(g, 2 + it // 5)
            pf = it + NS - 1 < NIT
            nx = it + NS - 1
            reads(it, 0, 0)
            if it > 0:
                mfmas(1, orient, False, {1: lambda: dma_piece(nx, 0), 3: lambda: dma_piece(nx, 1)} if pf else None)
            elif pf:
                dma_piece(nx, 0)
                dma_piece(nx, 1)
            reads(it, 1, 1)
            g("s_waitcnt lgkmcnt(6)")
            mfmas(0, orient, it == 0, {1: lambda: dma_piece(nx, 2), 3: lambda: dma_piece(nx, 3)} if pf else None)
        g("s_waitcnt lgkmcnt(0)")
        mfmas(1, orient, False)
        g.nop(16)
        stamp(g, 6)
        if orient == "qk":
            make_srd(g, 36, 8, WS_QK4, SZ_QK4)
            g("v_lshlrev_b32 v21, 14, v9")
            g("v_lshl_add_u32 v21, v8, 3, v21")
            g("s_lshl_b32 s40, s16, 18")
            g("s_lshl_b32 s41, s15, 9")
            g("s_add_u32 s40, s40, s41")
            g("v_add_u32 v21, s40, v21")
            g("s_lshl_b32 s40, s11, 19")
            g("s_lshl_b32 s41, s10, 10")
            g("s_add_u32 s40, s40, s41")
            k = 0
            for nt in range(2):
                for a in range(4):
                    g(f"s_add_u32 s41, s40, {(8*nt+2*a)*16384}")
                    for mt in range(2):
                        acc = ACC + 16 * (2 * mt + nt) + 4 * a
                        t = FR + 2 * (k % 8)
                        k += 1
                        g(f"v_cvt_pk_bf16_f32 v{t}, v{acc}, v{acc+1}")
                        g(f"v_cvt_pk_bf16_f32 v{t+1}, v{acc+2}, v{acc+3}")
                        g(f"buffer_store_dwordx2 {vr(t,2)}, v21, s[36:39], s41 offen offset:{256*mt}")
        else:
            make_srd(g, 36, 8, WS_VG, SZ_26)
            g("v_lshlrev_b32 v21, 5, v8")
            g("v_lshl_add_u32 v21, v9, 4, v21")
            g("s_lshl_b32 s40, s16, 11")
            g("s_mul_i32 s41, s15, 81920")
            g("s_add_u32 s40, s40, s41")
            g("v_add_u32 v21, s40, v21")
            g("s_mul_i32 s40, s10, 163840")
            g("s_sub_u32 s41, s11, 10")
            g("s_lshl_b32 s41, s41, 12")
            g("s_add_u32 s40, s40, s41")
            k = 0
            for mt in range(2):
                for ap in range(2):
                    g(f"s_add_u32 s41, s40, {(2*mt+ap)*20480}")
                    for nt in range(2):
                        acc = ACC + 16 * (2 * mt + nt) + 8 * ap
                        t = FR + 4 * (k % 4)
                        k += 1
                        for e in range(4):
                            g(f"v_cvt_pk_bf16_f32 v{t+e}, v{acc+2*e}, v{acc+2*e+1}")
                        g(f"buffer_store_dwordx4 {vr(t,4)}, v21, s[36:39], s41 offen offset:{1024*nt}")
        stamp(g, 7)
        if STAMPS: g("s_waitcnt vmcnt(0)")
        stamp_flush(g, 0, 8, 8)
        g("s_endpgm")


N_A1_WG = 2048 // (8 * A1_RL) * 10 // 4
TOUCH_WAIT = False


def gen_k1(g):
    name = "k1_kernel"
    kernel_begin(g, name)
    la1 = g.newlabel("a1")
    lend = g.newlabel("end")
    g("s_cmp_ge_u32 s2, 240")
    g(f"s_cbranch_scc1 {la1}")
    gen_gemm1(g)
    g.label(la1)
    g(f"s_cmp_ge_u32 s2, {240+N_A1_WG}")
    g(f"s_cbranch_scc1 {lend}")
    NPX = N_A1_WG // 8
    NB = NPX * 4
    g(f"s_load_dwordx4 s[4:7], s[0:1], {KA['x']}")
    g("v_lshrrev_b32 v1, 6, v0")
    g("v_and_b32 v2, 63, v0")
    g("s_sub_u32 s3, s2, 240")
    g("v_readfirstlane_b32 s19, v1")
    g("s_lshr_b32 s8, s3, 3")
    g("s_lshl_b32 s8, s8, 2")
    g("s_add_u32 s8, s8, s19")
    g("s_and_b32 s9, s3, 3")
    g("s_bfe_u32 s10, s3, 0x10002")
    g("s_lshl_b32 s3, s3, 2")
    g("s_add_u32 s3, s3, s19")
    g("v_lshrrev_b32 v3, 4, v2")
    g("v_mul_u32_u24 v3, 3840, v3")
    g("v_and_b32 v4, 15, v2")
    g("v_lshl_add_u32 v3, v4, 7, v3")
    g("s_mul_i32 s11, s8, 15360")
    g("s_mul_i32 s12, s10, 1792")
    g("s_add_u32 s11, s11, s12")
    g("v_mul_u32_u24 v4, 1280, v2")
    g("s_waitcnt lgkmcnt(0)")
    make_srd(g, 20, 4, 0, SZ_26)
    make_srd(g, 24, 6, 0, 640 * 3840)
    for t in range(160 // NB):
        g(f"buffer_load_dword v{12+t}, v3, s[24:27], s11 offen")
        g(f"s_add_u32 s11, s11, {NB*15360}")
        if t < 80 // NB:
            g(f"s_add_u32 s12, s8, {NB*t}")
            g("s_lshr_b32 s13, s12, 3")
            g("s_and_b32 s12, s12, 7")
            g("s_lshl_b32 s14, s9, 3")
            g("s_add_u32 s12, s12, s14")
            g("s_mul_i32 s12, s12, 81920")
            g("s_lshl_b32 s13, s13, 7")
            g("s_add_u32 s12, s12, s13")
            g(f"buffer_load_dword v{14+t}, v4, s[20:23], s12 offen")
    if TOUCH_WAIT:
        g("s_waitcnt vmcnt(0)")

    def tail():
        nun = N_A1_WG * 4
        g(f"s_load_dwordx2 s[4:5], s[0:1], {KA['ssmk']}")
        g(f"s_load_dwordx2 s[6:7], s[0:1], {KA['wo']}")
        g(f"s_load_dwordx2 s[8:9], s[0:1], {KA['q']}")
        g("v_and_b32 v1, 63, v0")
        g("v_lshlrev_b32 v1, 7, v1")
        g("s_waitcnt lgkmcnt(0)")
        for ptr, size in ((4, SZ_26), (6, 640 * 1280), (8, SZ_26)):
            make_srd(g, 20, ptr, 0, size)
            n = (size // 8192 + nun - 1) // nun
            g("s_lshl_b32 s12, s3, 13")
            for t in range(n):
                g("buffer_load_dword v2, v1, s[20:23], s12 offen")
                g(f"s_add_u32 s12, s12, {nun*8192}")
    nv = gen_a1(g, "s3", tail)
    g.label(lend)
    g("s_endpgm")
    return name


CV_COPY = 4160
CV_X = 4 * CV_COPY
N_CONV_WG = 640


def gen_conv(g):
    stamp(g, 0)
    g(f"s_load_dwordx4 s[4:7], s[0:1], {KA['ssmk']}")
    g(f"s_load_dwordx2 s[8:9], s[0:1], {KA['ws']}")
    g("v_lshrrev_b32 v1, 6, v0")
    g("v_and_b32 v2, 63, v0")
    g("s_nop 0")
    g("v_readfirstlane_b32 s12, v1")
    g("s_lshl_b32 s16, s3, 12")
    g("v_lshlrev_b32 v4, 4, v0")
    g("s_waitcnt lgkmcnt(0)")
    stamp(g, 1)
    g("s_lshl_b32 s18, s3, 1")
    g("s_and_b32 s18, s18, 0xfffffffc")
    g("s_load_dword s19, s[6:7], s18")
    make_srd(g, 20, 4, 0, SZ_26)
    make_srd(g, 24, 8, WS_XR, SZ_26)
    make_srd(g, 28, 8, WS_Y2T, SZ_26)
    H = 8
    X = 20
    for j in range(3):
        g(f"buffer_load_dwordx4 {vr(H+4*j,4)}, v4, s[20:23], s16 offen offset:{4*j}")
    g(f"buffer_load_dwordx4 {vr(X,4)}, v4, s[24:27], s16 offen")
    for i in range(4):
        g(f"v_mov_b32 v{44+i}, 0")
    g("v_cmp_gt_u32 vcc, 30, v0")
    g("s_and_saveexec_b64 s[32:33], vcc")
    g(f"ds_write_b128 v4, v[44:47] offset:{CV_X+4096}")
    g("s_mov_b64 exec, s[32:33]")
    g("v_and_b32 v6, 15, v2")
    g("v_lshrrev_b32 v7, 4, v2")
    g("v_add_u32 v32, 1, v6")
    g("v_and_b32 v33, 3, v32")
    g(f"v_mul_u32_u24 v33, {CV_COPY}, v33")
    g("v_lshrrev_b32 v32, 2, v32")
    g("v_lshl_add_u32 v33, v32, 3, v33")
    g("v_lshl_add_u32 v33, v7, 4, v33")
    g("s_lshl_b32 s35, s12, 7")
    g("v_add_u32 v3, s35, v33")
    g("v_lshlrev_b32 v32, 5, v6")
    g(f"v_sub_u32 v32, {CV_X+4064-3584}, v32")
    g("v_lshl_add_u32 v32, v7, 4, v32")
    g("v_add_u32 v5, s35, v32")
    g("s_waitcnt vmcnt(0)")
    stamp(g, 2)
    T = 24
    A, B, C = H, H + 4, H + 8
    for j in range(4):
        g(f"v_alignbyte_b32 v{T+j}, v{B+j}, v{A+j}, 2")
    for j in range(4):
        g(f"v_alignbyte_b32 v{T+4+j}, v{C+j}, v{B+j}, 2")
    g(f"ds_write_b128 v4, {vr(A,4)} offset:{0*CV_COPY+32}")
    g(f"ds_write_b128 v4, {vr(T,4)} offset:{1*CV_COPY+32}")
    g(f"ds_write_b128 v4, {vr(B,4)} offset:{2*CV_COPY+32}")
    g(f"ds_write_b128 v4, {vr(T+4,4)} offset:{3*CV_COPY+32}")
    g(f"ds_write_b128 v4, {vr(X,4)} offset:{CV_X}")
    g("v_cmp_eq_u32 vcc, 0, v0")
    g("s_and_saveexec_b64 s[32:33], vcc")
    g(f"v_lshlrev_b32 v34, 16, v{A}")
    g(f"v_alignbyte_b32 v35, v{A+1}, v{A}, 2")
    for sg in range(4):
        g(f"ds_write_b128 v4, v[44:47] offset:{sg*CV_COPY}")
    g(f"ds_write_b128 v4, v[44:47] offset:{0*CV_COPY+16}")
    g("v_mov_b32 v36, 0")
    g("v_mov_b32 v37, 0")
    g("v_mov_b32 v38, 0")
    g("v_mov_b32 v39, v34")
    g(f"ds_write_b128 v4, v[36:39] offset:{1*CV_COPY+16}")
    g("v_mov_b32 v40, 0")
    g("v_mov_b32 v41, 0")
    g("v_mov_b32 v42, 0")
    g(f"v_mov_b32 v43, v{A}")
    g(f"ds_write_b128 v4, v[40:43] offset:{2*CV_COPY+16}")
    g("v_mov_b32 v48, 0")
    g("v_mov_b32 v49, 0")
    g("v_mov_b32 v50, v34")
    g("v_mov_b32 v51, v35")
    g(f"ds_write_b128 v4, v[48:51] offset:{3*CV_COPY+16}")
    g("s_mov_b64 exec, s[32:33]")
    g("s_waitcnt lgkmcnt(0)")
    g("s_barrier")
    stamp(g, 3)
    ACC = 16
    FR = 48

    def rdA(rp, mu):
        g(f"ds_read_b64 {vr(FR+4*mu,2)}, v3 offset:{64*(8*mu+rp)}")
        g(f"ds_read_b64 {vr(FR+4*mu+2,2)}, v3 offset:{64*(8*mu+rp)+8}")

    def rdB(rp, tau):
        g(f"ds_read_b128 {vr(FR+32+4*tau,4)}, v5 offset:{64*(56-8*tau+rp)}")

    def mf(mu, tau, first=False):
        t = mu + tau
        acc = vr(ACC + 4 * t, 4)
        c = "0" if first else acc
        g(f"v_mfma_f32_16x16x32_bf16 {acc}, {vr(FR+4*mu,4)}, {vr(FR+32+4*tau,4)}, {c}")

    g("v_lshlrev_b32 v14, 5, v6")
    g("v_lshl_add_u32 v14, v7, 3, v14")
    g(f"v_sub_u32 v15, {CV_X+4088-512}, v14")
    g("s_lshl_b32 s36, s12, 10")
    g("v_subrev_u32 v15, s36, v15")
    KV = 112
    g(f"ds_read_b64 {vr(KV,2)}, v15 offset:512")
    g(f"ds_read_b64 {vr(KV+2,2)}, v15 offset:0")
    rdA(0, 0)
    for tau in range(8):
        rdB(0, tau)
    for mu in range(1, 8):
        rdA(0, mu)
    for mu in range(8):
        n = 2 * (7 - mu) + 3 * mu
        g(f"s_waitcnt lgkmcnt({min(n,15)})")
        for tau in range(8 - mu):
            mf(mu, tau, first=(mu == 0))
        rdA(1, mu)
        rdB(1, 7 - mu)
    for k in range(8):
        g(f"s_waitcnt lgkmcnt({min(3*(7-k),15)})")
        for mu in range(k + 1):
            mf(mu, 7 - k)
    g("s_barrier")
    stamp(g, 4)
    g("v_lshlrev_b32 v11, 4, v2")
    ljoin = g.newlabel("cvj")
    lw = [g.newlabel("cvw") for _ in range(4)]
    for w in range(1, 4):
        g(f"s_cmp_eq_u32 s12, {w}")
        g(f"s_cbranch_scc1 {lw[w]}")
    for w in range(4):
        g.label(lw[w])
        g.nop(4)
        for o in range(4):
            if o == w:
                continue
            j = w if w < o else w - 1
            for u in range(2):
                g(f"ds_write_b128 v11, {vr(ACC+4*(2*o+u),4)} offset:{((o*3+j)*2+u)*1024}")
        if w:
            for i in range(8):
                g(f"v_mov_b32 v{ACC+i}, v{ACC+8*w+i}")
        if w < 3:
            g(f"s_branch {ljoin}")
    g.label(ljoin)
    g("s_mul_i32 s36, s12, 6144")
    g("v_add_u32 v11, s36, v11")
    g("s_waitcnt lgkmcnt(0)")
    g("s_barrier")
    P = 48
    for j in range(6):
        g(f"ds_read_b128 {vr(P+4*j,4)}, v11 offset:{1024*j}")
    g("s_and_b32 s18, s3, 1")
    g("s_lshl_b32 s18, s18, 4")
    g("s_lshr_b32 s19, s19, s18")
    g("s_lshl_b32 s19, s19, 16")
    g("s_mov_b32 s37, 0xffff0000")
    g("s_lshl_b32 s36, s12, 10")
    g("s_add_u32 s36, s36, s16")
    U = 72
    for u in range(2):
        g(f"v_and_b32 v{U+4*u+0}, s37, v{KV+2*u+1}")
        g(f"v_lshlrev_b32 v{U+4*u+1}, 16, v{KV+2*u+1}")
        g(f"v_and_b32 v{U+4*u+2}, s37, v{KV+2*u}")
        g(f"v_lshlrev_b32 v{U+4*u+3}, 16, v{KV+2*u}")
        for r in range(4):
            g(f"v_mul_f32 v{U+4*u+r}, s19, v{U+4*u+r}")
        for r in range(4):
            g(f"v_cvt_pk_bf16_f32 v{U+4*u+r}, 0, v{U+4*u+r}")
    g("s_waitcnt lgkmcnt(0)")
    for u in range(2):
        a = ACC + 4 * u
        for j in range(3):
            for r in range(4):
                g(f"v_add_f32 v{a+r}, v{a+r}, v{P+4*(2*j+u)+r}")
        for r in range(4):
            g(f"v_cvt_pk_bf16_f32 v{a+r}, 0, v{a+r}")
        for r in range(4):
            g(f"v_add_f32 v{a+r}, v{a+r}, v{U+4*u+r}")
        g(f"v_cvt_pk_bf16_f32 v{a}, v{a}, v{a+1}")
        g(f"v_cvt_pk_bf16_f32 v{a+1}, v{a+2}, v{a+3}")
        g(f"buffer_store_dwordx2 {vr(a,2)}, v14, s[28:31], s36 offen offset:{512*u}")
    stamp(g, 5)
    if STAMPS: g("s_waitcnt vmcnt(0)")
    stamp_flush(g, 1, 6, 8)
    g("s_endpgm")


AT_K = 0
AT_V = 15360
AT_VG = 1008
AT_LDS = AT_V + 24 * AT_VG
NEG = 0xFF800000


def gen_attn(g):
    stamp(g, 0)
    g(f"s_load_dwordx2 s[8:9], s[0:1], {KA['ws']}")
    g("v_lshrrev_b32 v1, 6, v0")
    g("v_and_b32 v2, 63, v0")
    g("s_nop 0")
    g("v_readfirstlane_b32 s12, v1")
    g("s_lshl_b32 s13, s11, 7")
    g("s_sub_u32 s14, s13, 256")
    g("s_waitcnt lgkmcnt(0)")
    stamp(g, 1)
    make_srd(g, 20, 8, WS_QK4, SZ_QK4)
    make_srd(g, 24, 8, WS_VG, SZ_26)
    make_srd(g, 28, 8, WS_O4, SZ_26)
    g("s_mul_i32 s15, s10, 5")
    g("s_add_u32 s16, s15, 160")
    g("s_lshl_b32 s16, s16, 14")
    g("s_lshl_b32 s17, s14, 3")
    g("s_add_u32 s16, s16, s17")
    g("v_lshlrev_b32 v3, 4, v0")
    QF = 16
    KF = 24
    VF = 40
    M = 52
    O = 56
    S = 72
    ST = 72
    lskip = g.newlabel("atk")
    g("s_cmp_eq_u32 s12, 3")
    g(f"s_cbranch_scc1 {lskip}")
    for j in range(5):
        g(f"s_add_u32 s17, s16, {16384*j}")
        g(f"buffer_load_dwordx4 {vr(ST+4*j,4)}, v3, s[20:23], s17 offen")
    g.label(lskip)
    g("v_mul_u32_u24 v4, 0x667, v0")
    g("v_lshrrev_b32 v4, 16, v4")
    g("v_mul_u32_u24 v5, 40, v4")
    g("v_sub_u32 v5, v0, v5")
    g("s_ashr_i32 s17, s14, 4")
    g("v_add_u32 v6, s17, v4")
    g("s_movk_i32 s18, 20480")
    g("v_mul_lo_u32 v6, v6, s18")
    g("s_mul_i32 s18, s10, 640")
    g("v_lshl_add_u32 v6, v5, 4, v6")
    g("v_add_u32 v6, s18, v6")
    g(f"v_mul_u32_u24 v7, {AT_VG}, v4")
    g("v_lshrrev_b32 v8, 1, v5")
    g("v_mul_u32_u24 v8, 48, v8")
    g("v_add_u32 v7, v7, v8")
    g("v_and_b32 v8, 1, v5")
    g("v_lshl_add_u32 v7, v8, 4, v7")
    g("v_cmp_gt_u32 vcc, 240, v0")
    g("s_and_saveexec_b64 s[32:33], vcc")
    for it in range(4):
        if it:
            g(f"v_add_u32 v6, {6*20480}, v6")
        g(f"buffer_load_dwordx4 {vr(ST+20+4*it,4)}, v6, s[24:27], 0 offen")
    g("s_mov_b64 exec, s[32:33]")
    g("v_and_b32 v8, 31, v2")
    g("v_lshrrev_b32 v9, 5, v2")
    g("s_lshl_b32 s17, s12, 5")
    g("s_add_u32 s38, s17, s13")
    g("v_add_u32 v10, s38, v8")
    g("v_lshlrev_b32 v10, 3, v10")
    g("v_lshl_add_u32 v11, v9, 15, v10")
    g("s_lshl_b32 s18, s15, 14")
    g(f"buffer_load_dwordx2 {vr(QF,2)}, v11, s[20:23], s18 offen")
    g("s_add_u32 s19, s18, 16384")
    g(f"buffer_load_dwordx2 {vr(QF+2,2)}, v11, s[20:23], s19 offen")
    g("s_add_u32 s19, s18, 65536")
    g(f"buffer_load_dwordx2 {vr(QF+4,2)}, v10, s[20:23], s19 offen")
    g("v_lshrrev_b32 v12, 1, v0")
    g(f"v_mul_u32_u24 v12, {AT_VG}, v12")
    g("v_and_b32 v13, 1, v0")
    g("v_lshl_add_u32 v12, v13, 4, v12")
    for i in range(4):
        g(f"v_mov_b32 v{O+i}, 0x3f803f80")
    g("v_cmp_gt_u32 vcc, 48, v0")
    g("s_and_saveexec_b64 s[32:33], vcc")
    g(f"ds_write_b128 v12, {vr(O,4)} offset:{AT_V+960}")
    g("s_mov_b64 exec, s[32:33]")
    g("v_lshlrev_b32 v13, 2, v9")
    g("v_sub_u32 v13, v8, v13")
    for r in range(16):
        c = 8 * (r >> 2) + (r & 3)
        g(f"v_cmp_gt_i32 s[{40+2*r}:{41+2*r}], {c}, v13")
    g("s_lshl_b32 s17, s12, 8")
    g("v_lshl_add_u32 v14, v8, 3, s17")
    g("v_mul_u32_u24 v15, 6144, v9")
    g("v_add_u32 v15, v15, v14")
    g("v_min_u32 v12, 20, v8")
    g("v_cmp_lt_u32 vcc, 27, v8")
    g("v_mov_b32 v13, 4")
    g("s_nop 1")
    g("v_cndmask_b32 v12, v12, v13, vcc")
    g("v_mul_u32_u24 v12, 48, v12")
    g("v_lshl_add_u32 v12, v9, 4, v12")
    g(f"s_mul_i32 s17, s12, {2*AT_VG}")
    g(f"s_add_u32 s17, s17, {AT_V}")
    g("v_add_u32 v12, s17, v12")
    g(f"v_mov_b32 v13, {NEG:#x}")
    for b in range(2):
        g(f"v_mov_b32 v{KF+8*b+6}, 0")
        g(f"v_mov_b32 v{KF+8*b+7}, 0")
    g(f"v_mov_b32 v{QF+6}, 0")
    g(f"v_mov_b32 v{QF+7}, 0")
    g("v_cmp_eq_u32 s[34:35], 1, v9")
    import struct
    c = (20 ** -0.5) * 1.4426950408889634
    cb = struct.unpack("<I", struct.pack("<f", c))[0]
    g(f"s_mov_b32 s36, {cb:#x}")
    g("s_waitcnt vmcnt(3)")
    stamp(g, 2)
    lskip = g.newlabel("atk")
    g("s_cmp_eq_u32 s12, 3")
    g(f"s_cbranch_scc1 {lskip}")
    for j in range(5):
        g(f"ds_write_b128 v3, {vr(ST+4*j,4)} offset:{AT_K+3072*j}")
    g.label(lskip)
    g("v_cmp_gt_u32 vcc, 240, v0")
    g("s_and_saveexec_b64 s[32:33], vcc")
    for it in range(4):
        g(f"ds_write_b128 v7, {vr(ST+20+4*it,4)} offset:{AT_V+6*AT_VG*it}")
    g("s_mov_b64 exec, s[32:33]")
    g("s_waitcnt vmcnt(0)")
    g(f"v_cndmask_b32 v{QF+4}, v{QF+4}, 0, s[34:35]")
    g(f"v_cndmask_b32 v{QF+5}, v{QF+5}, 0, s[34:35]")
    g("s_waitcnt lgkmcnt(0)")
    g("s_barrier")
    stamp(g, 3)

    def kreads(tau, b):
        g(f"ds_read_b64 {vr(KF+8*b,2)}, v15 offset:{256*tau}")
        g(f"ds_read_b64 {vr(KF+8*b+2,2)}, v15 offset:{256*tau+3072}")
        g(f"ds_read_b64 {vr(KF+8*b+4,2)}, v14 offset:{256*tau+4*3072}")

    def vread(idx):
        g(f"ds_read_b128 {vr(VF+4*(idx%3),4)}, v12 offset:{AT_VG*idx}")

    kreads(0, 0)
    for ch in range(3):
        for tl in range(3):
            tau = 3 * ch + tl
            b = tau % 2
            if tl < 2:
                kreads(tau + 1, 1 - b)
                g("s_waitcnt lgkmcnt(3)")
            else:
                vread(6 * ch)
                vread(6 * ch + 1)
                g("s_waitcnt lgkmcnt(2)")
            s = vr(S + 16 * tl, 16)
            g(f"v_mfma_f32_32x32x16_bf16 {s}, {vr(KF+8*b,4)}, {vr(QF,4)}, 0")
            g(f"v_mfma_f32_32x32x16_bf16 {s}, {vr(KF+8*b+4,4)}, {vr(QF+4,4)}, {s}")
        if ch == 0:
            g.nop(2)
            for r in range(16):
                g(f"v_cndmask_b32 v{S+r}, v13, v{S+r}, s[{40+2*r}:{41+2*r}]")
        else:
            g.nop(12)
        lok = g.newlabel("atok")
        for tl in range(3):
            tau = 3 * ch + tl
            if tau == 8:
                continue
            g(f"s_cmp_ge_u32 s38, {256-32*tau}")
            g(f"s_cbranch_scc1 {lok}")
            for r in range(16):
                g(f"v_mov_b32 v{S+16*tl+r}, v13")
        g.label(lok)
        if ch == 2:
            for r in range(16):
                g(f"v_cndmask_b32 v{S+32+r}, v{S+32+r}, v13, s[{40+2*r}:{41+2*r}]")
        g(f"v_max3_f32 v{M+1}, v{S}, v{S+1}, v{S+2}")
        g(f"v_max3_f32 v{M+2}, v{S+3}, v{S+4}, v{S+5}")
        i = 6
        k = 0
        while i < 48:
            g(f"v_max3_f32 v{M+1+k}, v{M+1+k}, v{S+i}, v{S+i+1}")
            k ^= 1
            i += 2
        g(f"v_max_f32 v{M+1}, v{M+1}, v{M+2}")
        g(f"v_mov_b32 v{M+2}, v{M+1}")
        g("s_nop 1")
        g(f"v_permlane32_swap_b32 v{M+1}, v{M+2}")
        g("s_nop 1")
        if ch == 0:
            g(f"v_max_f32 v{M+1}, v{M+1}, v{M+2}")
            g(f"v_mul_f32 v{M}, s36, v{M+1}")
            g(f"v_max_f32 v{M}, 0xff7fffff, v{M}")
        else:
            g(f"v_max_f32 v{M+1}, v{M+1}, v{M+2}")
            g(f"v_mul_f32 v{M+1}, s36, v{M+1}")
            g(f"v_max_f32 v{M+1}, v{M+1}, v{M}")
            g(f"v_sub_f32 v{M+2}, v{M}, v{M+1}")
            g(f"v_exp_f32 v{M+2}, v{M+2}")
            g(f"v_mov_b32 v{M}, v{M+1}")
            for r in range(16):
                g(f"v_mul_f32 v{O+r}, v{O+r}, v{M+2}")
        if ch < 2:
            kreads(3 * ch + 3, (3 * ch + 3) % 2)
        for tl in range(3):
            sb = S + 16 * tl
            for r in range(16):
                g(f"v_fma_f32 v{sb+r}, v{sb+r}, s36, -v{M}")
            for r in range(16):
                g(f"v_exp_f32 v{sb+r}, v{sb+r}")
            g("s_nop 0")
            for j in range(8):
                g(f"v_cvt_pk_bf16_f32 v{sb+j}, v{sb+2*j}, v{sb+2*j+1}")
            for kp in range(2):
                li = 2 * tl + kp
                idx = 6 * ch + li
                if li + 2 < 6:
                    vread(idx + 2)
                extra = 3 if (ch < 2 and li < 2) else 0
                n = min(2, 5 - li) + extra
                g(f"s_waitcnt lgkmcnt({n})")
                cc = "0" if idx == 0 else vr(O, 16)
                if kp == 0:
                    g("s_nop 0")
                g(f"v_mfma_f32_32x32x16_bf16 {vr(O,16)}, {vr(VF+4*(idx%3),4)}, {vr(sb+4*kp,4)}, {cc}")
    g.nop(14)
    stamp(g, 5)
    g(f"v_cndmask_b32 v{M}, v{O+12}, v{O+8}, s[34:35]")
    g(f"v_rcp_f32 v{M}, v{M}")
    g("v_lshl_add_u32 v11, v9, 14, v10")
    for r in range(12):
        g(f"v_mul_f32 v{O+r}, v{O+r}, v{M}")
    for a in range(3):
        g(f"v_cvt_pk_bf16_f32 v{S+2*a}, v{O+4*a}, v{O+4*a+1}")
        g(f"v_cvt_pk_bf16_f32 v{S+2*a+1}, v{O+4*a+2}, v{O+4*a+3}")
    for a in range(3):
        g(f"s_add_u32 s19, s18, {2*a*16384}")
        if a == 2:
            g("s_andn2_b64 exec, exec, s[34:35]")
        g(f"buffer_store_dwordx2 {vr(S+2*a,2)}, v11, s[28:31], s19 offen")
    if STAMPS: g("s_waitcnt vmcnt(0)")
    stamp_flush(g, 1, 6, 8)
    g("s_endpgm")


def gen_k2(g):
    name = "k2_kernel"
    kernel_begin(g, name)
    lat = g.newlabel("attn")
    lend = g.newlabel("end")
    lc2 = g.newlabel("c2")
    lcv = g.newlabel("cv")
    g("s_cmp_ge_u32 s2, 1152")
    g(f"s_cbranch_scc1 {lend}")
    g("s_cmp_ge_u32 s2, 1024")
    g(f"s_cbranch_scc1 {lc2}")
    g("s_and_b32 s4, s2, 7")
    g("s_lshr_b32 s5, s2, 4")
    g("s_bitcmp1_b32 s2, 3")
    g(f"s_cbranch_scc1 {lat}")
    g("s_lshl_b32 s3, s5, 3")
    g("s_add_u32 s3, s3, s4")
    g(f"s_branch {lcv}")
    g.label(lc2)
    g("s_sub_u32 s3, s2, 512")
    g.label(lcv)
    gen_conv(g)
    g.label(lat)
    g("s_lshr_b32 s10, s5, 4")
    g("s_lshl_b32 s10, s10, 3")
    g("s_add_u32 s10, s10, s4")
    g("s_and_b32 s11, s5, 15")
    gen_attn(g)
    g.label(lend)
    g("s_endpgm")
    return name


G2_NS = 5
G2_STAGE = 12288


def gen_gemm2(g):
    NS = G2_NS
    NIT = 20
    stamp(g, 0)
    g(f"s_load_dwordx4 s[4:7], s[0:1], {KA['wo']}")
    g(f"s_load_dwordx2 s[8:9], s[0:1], {KA['ws']}")
    g("s_and_b32 s10, s2, 7")
    g("s_lshr_b32 s11, s2, 3")
    g("s_and_b32 s12, s11, 1")
    g("s_lshl_b32 s10, s10, 1")
    g("s_add_u32 s10, s10, s12")
    g("s_lshr_b32 s11, s11, 1")
    g("v_lshrrev_b32 v1, 6, v0")
    g("v_and_b32 v2, 63, v0")
    g("s_nop 0")
    g("v_readfirstlane_b32 s12, v1")
    g("v_lshlrev_b32 v3, 4, v2")
    g("s_lshl_b32 s14, s12, 15")
    g("v_add_u32 v3, s14, v3")
    g("v_lshrrev_b32 v4, 3, v2")
    g("s_movk_i32 s13, 1280")
    g("v_mul_lo_u32 v7, v4, s13")
    g("v_bfe_u32 v5, v2, 2, 1")
    g("v_bfe_u32 v6, v2, 4, 1")
    g("v_xor_b32 v5, v5, v6")
    g("v_lshl_add_u32 v7, v5, 6, v7")
    g("v_and_b32 v5, 3, v2")
    g("v_lshl_add_u32 v7, v5, 4, v7")
    g("s_mul_i32 s14, s12, 10240")
    g("v_add_u32 v7, s14, v7")
    g("s_lshr_b32 s15, s12, 1")
    g("s_and_b32 s16, s12, 1")
    g("v_and_b32 v8, 31, v2")
    g("v_lshrrev_b32 v9, 5, v2")
    g("s_lshl_b32 s17, s15, 9")
    g("v_lshl_add_u32 v11, v8, 3, s17")
    g("v_lshl_add_u32 v11, v9, 11, v11")
    g("v_bfe_u32 v13, v2, 2, 2")
    g("v_lshl_add_u32 v14, v9, 3, v13")
    g("v_lshlrev_b32 v14, 7, v14")
    g("v_bfe_u32 v15, v2, 4, 1")
    g("v_lshl_add_u32 v14, v15, 5, v14")
    g("v_lshl_add_u32 v14, v5, 3, v14")
    g("v_add_u32 v14, 8192, v14")
    g("v_lshrrev_b32 v15, 1, v13")
    g("v_xor_b32 v15, s16, v15")
    g("v_lshl_add_u32 v15, v15, 6, v14")
    g("s_waitcnt lgkmcnt(0)")
    stamp(g, 1)
    make_srd(g, 20, 8, WS_O4, SZ_26)
    make_srd(g, 24, 4, 0, 640 * 1280)
    g("s_lshl_b32 s28, s10, 10")
    g("s_add_u32 s29, s28, 16384")
    g("s_lshl_b32 s30, s11, 7")
    g("s_lshl_b32 s32, s12, 11")
    g("s_lshl_b32 s33, s12, 10")

    def dma_piece(it, j):
        base = (it % NS) * G2_STAGE
        sm, off, vo, srd, so, inc = [(32, 0, 3, 20, 28, 8*16384), (32, 1024, 3, 20, 29, 8*16384), (33, 8192, 7, 24, 30, 32*1280)][j]
        g(f"s_add_u32 m0, s{sm}, {base+off}")
        g("s_nop 0")
        g(f"buffer_load_dwordx4 v{vo}, s[{srd}:{srd+3}], s{so} offen lds")
        g(f"s_add_u32 s{so}, s{so}, {inc}")

    def issue_dma(it):
        for j in range(3):
            dma_piece(it, j)

    for it in range(NS - 1):
        issue_dma(it)
    ACC = 32
    FR = 64

    def reads(it, ks, b):
        base = (it % NS) * G2_STAGE
        for mt in range(2):
            for a in range(2):
                g(f"ds_read_b64 {vr(FR+12*b+4*mt+2*a,2)}, v11 offset:{base+4096*ks+1024*a+256*mt}")
        for half in range(2):
            g(f"ds_read_b64_tr_b16 {vr(FR+12*b+8+2*half,2)}, v15 offset:{base+2048*ks+512*half}")

    def mfmas(b, first, hooks=None):
        for mt in range(2):
            if hooks and mt in hooks:
                hooks[mt]()
            acc = vr(ACC + 16 * mt, 16)
            c = "0" if first else acc
            g(f"v_mfma_f32_32x32x16_bf16 {acc}, {vr(FR+12*b+8,4)}, {vr(FR+12*b+4*mt,4)}, {c}")

    for it in range(NIT):
        n = 3 * (min(it + NS - 2, NIT - 1) - it)
        g(f"s_waitcnt vmcnt({n}) lgkmcnt(0)")
        g("s_barrier")
        if it in (0, 5, 10, 15):
            stamp(g, 2 + it // 5)
        pf = it + NS - 1 < NIT
        nx = it + NS - 1
        reads(it, 0, 0)
        if it > 0:
            mfmas(1, False, {1: lambda: dma_piece(nx, 0)} if pf else None)
        elif pf:
            dma_piece(nx, 0)
        reads(it, 1, 1)
        if pf:
            dma_piece(nx, 1)
        g("s_waitcnt lgkmcnt(6)")
        mfmas(0, it == 0, {1: lambda: dma_piece(nx, 2)} if pf else None)
    g("s_waitcnt lgkmcnt(0)")
    mfmas(1, False)
    g("s_barrier")
    stamp(g, 6)
    g("s_mul_i32 s17, s15, 9216")
    g("s_lshl_b32 s18, s16, 6")
    g("s_add_u32 s17, s17, s18")
    g("v_mul_u32_u24 v16, 144, v8")
    g("v_lshl_add_u32 v16, v9, 3, v16")
    g("v_add_u32 v16, s17, v16")
    g.nop(10)
    k = 0
    for mt in range(2):
        for a in range(4):
            acc = ACC + 16 * mt + 4 * a
            t = FR + 2 * (k % 8)
            k += 1
            g(f"v_cvt_pk_bf16_f32 v{t}, v{acc}, v{acc+1}")
            g(f"v_cvt_pk_bf16_f32 v{t+1}, v{acc+2}, v{acc+3}")
            g(f"ds_write_b64 v16, {vr(t,2)} offset:{4608*mt+16*a}")
    make_srd(g, 36, 6, 0, 2 * SZ_26)
    g("v_lshrrev_b32 v17, 3, v0")
    g("v_and_b32 v18, 7, v0")
    g("v_mul_u32_u24 v19, 144, v17")
    g("v_lshl_add_u32 v19, v18, 4, v19")
    g("s_movk_i32 s13, 2560")
    g("v_mul_lo_u32 v20, v17, s13")
    g("v_lshl_add_u32 v20, v18, 4, v20")
    g("s_mul_i32 s40, s10, 327680")
    g("s_lshl_b32 s41, s11, 7")
    g("s_add_u32 s40, s40, s41")
    g("s_add_u32 s40, s40, 1280")
    g("s_waitcnt lgkmcnt(0)")
    g("s_barrier")
    for it in range(4):
        g(f"ds_read_b128 {vr(ACC+4*it,4)}, v19 offset:{4608*it}")
    for it in range(4):
        g(f"s_waitcnt lgkmcnt({3-it})")
        g(f"buffer_store_dwordx4 {vr(ACC+4*it,4)}, v20, s[36:39], s40 offen")
        g(f"s_add_u32 s40, s40, {32*2560}")
    stamp(g, 7)
    if STAMPS: g("s_waitcnt vmcnt(0)")
    stamp_flush(g, 2, 8, 8)
    g("s_endpgm")


def gen_k3(g):
    name = "k3_kernel"
    kernel_begin(g, name)
    la3 = g.newlabel("a3")
    lend = g.newlabel("end")
    g("s_cmp_ge_u32 s2, 160")
    g(f"s_cbranch_scc1 {la3}")
    gen_gemm2(g)
    g.label(la3)
    g("s_cmp_ge_u32 s2, 240")
    g(f"s_cbranch_scc1 {lend}")
    g("v_lshrrev_b32 v1, 6, v0")
    g("s_sub_u32 s3, s2, 160")
    g("s_lshl_b32 s3, s3, 2")
    g("v_readfirstlane_b32 s19, v1")
    g("s_nop 3")
    g("s_add_u32 s3, s3, s19")
    gen_a3(g, "s3")
    g.label(lend)
    g("s_endpgm")
    return name


def main(path):
    g = G()
    k2_lds = AT_LDS
    g.raw(f"; @launch kernel=k1_kernel grid=({240+N_A1_WG},1,1) block=(256,1,1) lds={G1_NS*G1_STAGE}")
    g.raw(f"; @launch kernel=k2_kernel grid=({N_CONV_WG+512},1,1) block=(256,1,1) lds={k2_lds}")
    g.raw(f"; @launch kernel=k3_kernel grid=(240,1,1) block=(256,1,1) lds={G2_NS*G2_STAGE}")
    g.raw('.amdgcn_target "amdgcn-amd-amdhsa--gfx950"')
    g.raw(".text")
    gen_k1(g)
    gen_k2(g)
    gen_k3(g)
    g.raw('.section .rodata,"a"')
    g.raw(".p2align 6")
    kernel_desc(g, "k1_kernel", 184)
    g.raw(".p2align 6")
    kernel_desc(g, "k2_kernel", 128)
    g.raw(".p2align 6")
    kernel_desc(g, "k3_kernel", 128)
    open(path, "w").write("\n".join(g.lines) + "\n")


if __name__ == "__main__":
    if "--stamps" in sys.argv:
        STAMPS = True
        sys.argv.remove("--stamps")
    main(sys.argv[1] if len(sys.argv) > 1 else f"cdna_kernels/{NAME}.s")
```

```python
import sys

NAME = "concat_heads__ssm_conv_h3__sliding_block__prompt"

WS_XR = 0x000000
WS_QK4 = 0x280000
WS_VG = 0x780000
WS_O4 = 0xA00000
WS_Y2T = 0xC80000
SZ_26 = 2621440
SZ_QK4 = 5242880

KA = dict(q=0, k=8, v=16, shift=24, ssmk=32, ssmD=40, x=48, wqkv=56, wo=64, out=72, dbg=80, ws=88)


class G:
    def __init__(self):
        self.lines = []
        self.uid = 0

    def __call__(self, s):
        self.lines.append("    " + s)

    def label(self, name):
        self.lines.append(name + ":")

    def raw(self, s):
        self.lines.append(s)

    def newlabel(self, p="L"):
        self.uid += 1
        return f".{p}_{self.uid}"

    def nop(self, n):
        while n > 0:
            k = min(n, 16)
            self(f"s_nop {k-1}")
            n -= k


def vr(a, n=1):
    return f"v{a}" if n == 1 else f"v[{a}:{a+n-1}]"


def sr(a, n=1):
    return f"s{a}" if n == 1 else f"s[{a}:{a+n-1}]"


def make_srd(g, d, ptr, off, size):
    if off:
        g(f"s_add_u32 s{d}, s{ptr}, {off:#x}")
        g(f"s_addc_u32 s{d+1}, s{ptr+1}, 0")
    else:
        g(f"s_mov_b32 s{d}, s{ptr}")
        g(f"s_mov_b32 s{d+1}, s{ptr+1}")
    g(f"s_mov_b32 s{d+2}, {size:#x}")
    g(f"s_mov_b32 s{d+3}, 0x00020000")


STAMPS = False
STF = 'sc1'
NTI = 'nt'
NTW = 'nt'
NTO = ''
NTM = ''
NTH = 'nt'
WS_ST = 0x1000000


def stamp(g, idx):
    if not STAMPS:
        return
    g("s_memrealtime s[98:99]")
    g("s_waitcnt lgkmcnt(0)")
    g(f"s_mov_b32 s{80+idx}, s98")


def stamp_flush(g, kidx, n, wsptr):
    if not STAMPS:
        return
    stamp(g, n)
    n += 1
    g("s_mov_b64 exec, -1")
    g(f"s_add_u32 s96, s{wsptr}, {WS_ST + kidx*0x40000:#x}")
    g(f"s_addc_u32 s97, s{wsptr+1}, 0")
    g("s_mov_b32 s98, 0x40000")
    g("s_mov_b32 s99, 0x00020000")
    g("v_cmp_eq_u32 vcc, 0, v0")
    g("s_and_saveexec_b64 s[94:95], vcc")
    g("s_lshl_b32 s94, s2, 6")
    g("v_mov_b32 v1, s94")
    for i in range(n):
        g(f"v_mov_b32 v2, s{80+i}")
        g(f"buffer_store_dword v2, v1, s[96:99], 0 offen offset:{4*i}")


DBGT = False


def kernel_begin(g, name):
    g.raw(f".globl {name}")
    g.raw(".p2align 8")
    g.raw(f".type {name},@function")
    g.label(name)
    if DBGT:
        g("s_memrealtime s[72:73]")
        g("s_memtime s[74:75]")


def dbg_end(g, kidx):
    if not DBGT:
        return
    l = g.newlabel("dbg")
    g("s_cmp_lg_u32 s2, 0")
    g(f"s_cbranch_scc1 {l}")
    g("s_waitcnt vmcnt(0)")
    g("s_memrealtime s[76:77]")
    g("s_memtime s[78:79]")
    g(f"s_load_dwordx2 s[84:85], s[0:1], {KA['dbg']}")
    g("s_waitcnt lgkmcnt(0)")
    g("s_mov_b32 s86, 256")
    g("s_mov_b32 s87, 0x00020000")
    g("s_mov_b64 exec, 1")
    g("v_mov_b32 v1, 0")
    for i, v in enumerate([str(100 + kidx), "s72", "s76", "s74", "s78"]):
        g(f"v_mov_b32 v2, {v}")
        g(f"buffer_store_dword v2, v1, s[84:87], 0 offen offset:{4*i}")
    g.label(l)


def kernel_desc(g, name, vgpr, sgpr=102):
    acc = (vgpr + 3) // 4 * 4
    g.raw(f".amdhsa_kernel {name}")
    g.raw(f"  .amdhsa_next_free_vgpr {vgpr}")
    g.raw(f"  .amdhsa_next_free_sgpr {sgpr}")
    g.raw(f"  .amdhsa_accum_offset {acc}")
    g.raw("  .amdhsa_group_segment_fixed_size 0")
    g.raw("  .amdhsa_kernarg_size 96")
    g.raw("  .amdhsa_user_sgpr_count 2")
    g.raw("  .amdhsa_user_sgpr_kernarg_segment_ptr 1")
    g.raw("  .amdhsa_system_sgpr_workgroup_id_x 1")
    g.raw("  .amdhsa_float_denorm_mode_32 3")
    g.raw(".end_amdhsa_kernel")


A1_RL = 4
N_A1_WG = 2048 // (8 * A1_RL) * 10 // 4


def gen_a1_multi(g, s_wv, nwv):
    RL = A1_RL
    NR = RL + 3
    NU = (640 + nwv - 1) // nwv
    g(f"s_load_dwordx4 s[4:7], s[0:1], {KA['k']}")
    g(f"s_load_dwordx2 s[8:9], s[0:1], {KA['shift']}")
    g(f"s_load_dwordx2 s[10:11], s[0:1], {KA['ws']}")
    g("v_and_b32 v1, 63, v0")
    g("v_and_b32 v2, 7, v1")
    g("v_lshrrev_b32 v3, 3, v1")
    g(f"v_mul_u32_u24 v3, {RL}, v3")
    g("v_mov_b32 v9, 0x80000000")
    g("s_waitcnt lgkmcnt(0)")
    make_srd(g, 20, 4, 0, SZ_26)
    make_srd(g, 24, 6, 0, SZ_26)
    make_srd(g, 28, 8, 0, 5120)
    make_srd(g, 32, 10, WS_XR, SZ_26)
    RAW = 64
    PER = 4 * NR + 4 * RL + 16
    for u in range(NU):
        g(f"s_add_u32 s12, {s_wv}, {u*nwv}")
        g("s_mul_hi_u32 s13, s12, 0x1999999a")
        g("s_mul_i32 s14, s13, 10")
        g("s_sub_u32 s14, s12, s14")
        g(f"s_mul_i32 s13, s13, {8*RL}")
        g("v_add_u32 v4, s13, v3")
        g("s_lshl_b32 s15, s14, 6")
        g("v_lshl_add_u32 v5, v2, 3, s15")
        g("v_mul_u32_u24 v6, 1280, v4")
        g("v_lshl_add_u32 v6, v5, 1, v6")
        g("v_subrev_u32 v8, 3840, v6")
        g("v_cmp_eq_u32 vcc, 0, v4")
        g("v_lshlrev_b32 v7, 3, v5")
        g(f"v_lshlrev_b32 v{10+u}, 12, v5")
        g("v_cndmask_b32 v8, v8, v9, vcc")
        g(f"v_sub_u32 v4, {2048-RL}, v4")
        g(f"v_lshl_add_u32 v{10+u}, v4, 1, v{10+u}")
        KR = RAW + PER * u
        VR = KR + 4 * NR
        WR = VR + 4 * RL
        for r in range(3):
            g(f"buffer_load_dwordx4 {vr(KR+4*r,4)}, v8, s[20:23], 0 offen offset:{1280*r} {NTI}")
        for r in range(RL):
            g(f"buffer_load_dwordx4 {vr(KR+12+4*r,4)}, v6, s[20:23], 0 offen offset:{1280*r} {NTI}")
        for j in range(4):
            g(f"buffer_load_dwordx4 {vr(WR+4*j,4)}, v7, s[28:31], 0 offen offset:{16*j}")
        for r in range(RL):
            g(f"buffer_load_dwordx4 {vr(VR+4*r,4)}, v6, s[24:27], 0 offen offset:{1280*r} {NTI}")
    g("s_mov_b32 s17, 0xffff0000")
    NL = NR + 4 + RL
    KF = 16
    WF = KF + 12
    T = WF + 4
    OUT = T + 12
    PK = OUT + 8
    NP = RL // 2
    ldone = g.newlabel("a1done")
    for u in range(NU):
        if (u + 1) * nwv > 640:
            g(f"s_add_u32 s12, {s_wv}, {u*nwv}")
            g("s_cmp_ge_u32 s12, 640")
            g(f"s_cbranch_scc1 {ldone}")
        g(f"s_waitcnt vmcnt({NL*(NU-1-u) + 8*u})")
        KR = RAW + PER * u
        VR = KR + 4 * NR
        WR = VR + 4 * RL
        for ch in range(8):
            j, hi = ch // 2, ch % 2
            for r in range(NR):
                src = KR + 4 * r + j
                if hi:
                    g(f"v_and_b32 v{KF+r}, s17, v{src}")
                else:
                    g(f"v_lshlrev_b32 v{KF+r}, 16, v{src}")
            g(f"v_lshlrev_b32 v{WF+0}, 16, v{WR+2*ch}")
            g(f"v_and_b32 v{WF+1}, s17, v{WR+2*ch}")
            g(f"v_lshlrev_b32 v{WF+2}, 16, v{WR+2*ch+1}")
            g(f"v_and_b32 v{WF+3}, s17, v{WR+2*ch+1}")
            for s0 in range(0, RL, 2):
                for uu in range(2):
                    sx = s0 + uu
                    t = T + 6 * uu
                    g(f"v_mul_f32 v{t}, v{KF+sx}, v{WF+3}")
                    g(f"v_mul_f32 v{t+1}, v{KF+sx+1}, v{WF+2}")
                    g(f"v_mul_f32 v{t+2}, v{KF+sx+2}, v{WF+1}")
                    g(f"v_mul_f32 v{t+3}, v{KF+sx+3}, v{WF+0}")
                    src = VR + 4 * sx + j
                    if hi:
                        g(f"v_and_b32 v{t+4}, s17, v{src}")
                    else:
                        g(f"v_lshlrev_b32 v{t+4}, 16, v{src}")
                for uu in range(2):
                    t = T + 6 * uu
                    for q in range(4):
                        g(f"v_cvt_pk_bf16_f32 v{t+q}, 0, v{t+q}")
                for q in range(1, 4):
                    for uu in range(2):
                        t = T + 6 * uu
                        g(f"v_add_f32 v{t}, v{t}, v{t+q}")
                    for uu in range(2):
                        t = T + 6 * uu
                        g(f"v_cvt_pk_bf16_f32 v{t}, 0, v{t}")
                for uu in range(2):
                    t = T + 6 * uu
                    g(f"v_mul_f32 v{OUT+s0+uu}, v{t}, v{t+4}")
            pk = PK + NP * (ch % 4)
            for e in range(NP):
                g(f"v_cvt_pk_bf16_f32 v{pk+e}, v{OUT+RL-1-2*e}, v{OUT+RL-2-2*e}")
            g(f"s_mov_b32 s18, {4096*ch}")
            g(f"buffer_store_dwordx{NP} {vr(pk,NP)}, v{10+u}, s[32:35], s18 offen {STF}")
    g.label(ldone)
    return RAW + PER * NU


def gen_a3(g, s_unit):
    stamp(g, 0)
    g(f"s_load_dwordx2 s[4:5], s[0:1], {KA['q']}")
    g(f"s_load_dwordx2 s[6:7], s[0:1], {KA['out']}")
    g(f"s_load_dwordx2 s[10:11], s[0:1], {KA['ws']}")
    g(f"s_mul_hi_u32 s12, {s_unit}, 0x1999999a")
    g(f"s_mul_i32 s13, s12, 10")
    g(f"s_sub_u32 s13, {s_unit}, s13")
    g("v_and_b32 v1, 63, v0")
    g("v_and_b32 v2, 7, v1")
    g("v_lshrrev_b32 v3, 3, v1")
    g("s_lshl_b32 s14, s12, 6")
    g("v_lshl_add_u32 v4, v3, 3, s14")
    g("s_lshl_b32 s15, s13, 6")
    g("v_lshl_add_u32 v5, v2, 3, s15")
    g("s_movk_i32 s16, 1280")
    g("v_mul_lo_u32 v6, v4, s16")
    g("v_lshl_add_u32 v7, v5, 1, v6")
    g("v_add_u32 v8, 5120, v7")
    g("v_lshlrev_b32 v6, 1, v6")
    g("v_lshl_add_u32 v9, v5, 1, v6")
    g("v_lshlrev_b32 v10, 12, v5")
    g("v_lshl_add_u32 v10, v4, 1, v10")
    g("s_waitcnt lgkmcnt(0)")
    stamp(g, 1)
    make_srd(g, 20, 4, 0, SZ_26)
    make_srd(g, 24, 6, 0, 2 * SZ_26)
    make_srd(g, 28, 10, WS_Y2T, SZ_26)
    QR = 16
    YR = 48
    for r in range(8):
        vo = "v7" if r < 4 else "v8"
        g(f"buffer_load_dwordx4 {vr(QR+4*r,4)}, {vo}, s[20:23], 0 offen offset:{1280*(r%4)} {NTI}")
    for ch in range(8):
        g(f"s_mov_b32 s18, {4096*ch}")
        g(f"buffer_load_dwordx4 {vr(YR+4*ch,4)}, v10, s[28:31], s18 offen {NTM}")
    g("s_mov_b32 s17, 0xffff0000")
    g("s_waitcnt vmcnt(0)")
    stamp(g, 2)
    T = 80
    PK = 96
    for s in range(8):
        for j in range(4):
            t = T + 4 * (j % 2)
            g(f"v_lshlrev_b32 v{t}, 16, v{QR+4*s+j}")
            g(f"v_and_b32 v{t+1}, s17, v{QR+4*s+j}")
            for u in range(2):
                src = YR + 4 * (2 * j + u) + s // 2
                if s % 2:
                    g(f"v_and_b32 v{t+2+u}, s17, v{src}")
                else:
                    g(f"v_lshlrev_b32 v{t+2+u}, 16, v{src}")
            g(f"v_mul_f32 v{t}, v{t}, v{t+2}")
            g(f"v_mul_f32 v{t+1}, v{t+1}, v{t+3}")
            g(f"v_cvt_pk_bf16_f32 v{PK+4*s+j}, v{t}, v{t+1}")
    for s in range(8):
        g(f"s_mov_b32 s18, {2560*s}")
        g(f"buffer_store_dwordx4 {vr(PK+4*s,4)}, v9, s[24:27], s18 offen {NTO}")
    stamp(g, 3)
    if STAMPS: g("s_waitcnt vmcnt(0)")
    stamp_flush(g, 2, 4, 10)
    g("s_endpgm")


G1_NS = 3
G1_STAGE = 16384 + 24576
N_G1_WG = 160
N_AUX_WG = 96


def gen_gemm1(g):
    NS = G1_NS
    NIT = 10
    NPC = 10
    stamp(g, 0)
    g(f"s_load_dwordx4 s[4:7], s[0:1], {KA['x']}")
    g(f"s_load_dwordx2 s[8:9], s[0:1], {KA['ws']}")
    g("s_and_b32 s12, s2, 3")
    g("s_bfe_u32 s13, s2, 0x10002")
    g("s_lshr_b32 s14, s2, 3")
    g("s_lshl_b32 s10, s12, 2")
    g("s_and_b32 s15, s14, 3")
    g("s_add_u32 s10, s10, s15")
    g("s_mul_i32 s11, s13, 5")
    g("s_lshr_b32 s15, s14, 2")
    g("s_add_u32 s11, s11, s15")
    g("v_lshrrev_b32 v1, 6, v0")
    g("v_and_b32 v2, 63, v0")
    g("s_nop 0")
    g("v_readfirstlane_b32 s12, v1")
    g("v_lshrrev_b32 v3, 3, v2")
    g("v_mul_u32_u24 v3, 1280, v3")
    g("v_lshrrev_b32 v4, 4, v2")
    g("v_and_b32 v5, 7, v2")
    g("v_xor_b32 v6, v5, v4")
    g("v_xor_b32 v7, 4, v6")
    g("s_mul_i32 s14, s12, 40960")
    g("v_add_u32 v3, s14, v3")
    g("v_lshl_add_u32 v6, v6, 4, v3")
    g("v_lshl_add_u32 v7, v7, 4, v3")
    g("s_mul_i32 s14, s12, 384")
    VB = [16, 17, 18, 19, 20, 21]
    for i in range(6):
        g(f"v_add_u32 v8, s14, v2")
        if i:
            g(f"v_add_u32 v8, {64*i}, v8")
        g("v_mul_u32_u24 v9, 0xaab, v8")
        g("v_lshrrev_b32 v9, 16, v9")
        g("v_mul_u32_u24 v10, 24, v9")
        g("v_sub_u32 v10, v8, v10")
        g("v_bfe_u32 v11, v9, 1, 1")
        g("v_lshlrev_b32 v11, 2, v11")
        g("v_xor_b32 v10, v10, v11")
        g("v_mul_u32_u24 v9, 3840, v9")
        g(f"v_lshl_add_u32 v{VB[i]}, v10, 4, v9")
    g("s_lshr_b32 s15, s12, 1")
    g("s_and_b32 s16, s12, 1")
    g("v_and_b32 v8, 31, v2")
    g("v_lshrrev_b32 v9, 5, v2")
    g("v_bfe_u32 v10, v8, 1, 3")
    g("v_xor_b32 v10, v9, v10")
    g("s_lshl_b32 s17, s15, 13")
    g("v_lshl_add_u32 v11, v8, 7, s17")
    B0 = 22
    for ks in range(4):
        g(f"v_xor_b32 v12, {2*ks}, v10")
        g(f"v_lshl_add_u32 v{B0+ks}, v12, 4, v11")
    g("v_bfe_u32 v13, v2, 2, 2")
    g("v_lshl_add_u32 v14, v9, 3, v13")
    g("v_mul_u32_u24 v14, 384, v14")
    g("v_and_b32 v15, 1, v4")
    g("v_lshl_add_u32 v14, v15, 5, v14")
    g("v_and_b32 v15, 3, v2")
    g("v_lshl_add_u32 v14, v15, 3, v14")
    g("v_add_u32 v14, 16384, v14")
    g("v_lshrrev_b32 v13, 1, v13")
    g("s_mul_i32 s17, s16, 3")
    for nt in range(3):
        g(f"s_add_u32 s18, s17, {nt}")
        g("v_xor_b32 v15, s18, v13")
        g(f"v_lshl_add_u32 v{B0+4+nt}, v15, 6, v14")
    for st in range(1, NS):
        for i in range(7):
            g(f"v_add_u32 v{B0+7*st+i}, {st*G1_STAGE}, v{B0+i}")
    assert B0 + 7 * NS <= 52
    g("s_waitcnt lgkmcnt(0)")
    stamp(g, 1)
    make_srd(g, 20, 4, 0, SZ_26)
    make_srd(g, 24, 6, 0, 640 * 3840)
    g("s_mul_i32 s28, s10, 163840")
    g("s_mul_i32 s30, s11, 384")
    g("s_lshl_b32 s32, s12, 12")
    g("s_mul_i32 s33, s12, 6144")
    g("s_and_b32 s34, s10, 3")
    g("s_mul_i32 s34, s34, 5")
    g("s_lshr_b32 s34, s34, 1")
    g("s_mul_i32 s35, s11, 3")
    g("s_add_u32 s34, s34, s35")
    g("s_lshr_b32 s35, s10, 2")
    g("s_add_u32 s34, s34, s35")
    g("s_mul_hi_u32 s35, s34, 0x1999999a")
    g("s_mul_i32 s35, s35, 10")
    g("s_sub_u32 s34, s34, s35")
    g("s_lshl_b32 s35, s34, 7")
    g("s_add_u32 s28, s28, s35")
    g("s_mul_i32 s35, s34, 245760")
    g("s_add_u32 s30, s30, s35")
    g("s_mov_b32 s37, 245760")
    g("s_movk_i32 s38, 128")

    def dma_piece(it, j):
        base = (it % NS) * G1_STAGE
        if j < 4:
            g(f"s_add_u32 m0, s32, {base + 1024*j}")
            if j:
                g(f"s_add_u32 s29, s28, {10240*j}")
            else:
                g("s_nop 0")
            g(f"buffer_load_dwordx4 v{6 + (j & 1)}, s[20:23], s{29 if j else 28} offen {NTW} lds")
        else:
            i = j - 4
            g(f"s_add_u32 m0, s33, {base + 16384 + 1024*i}")
            g("s_nop 0")
            g(f"buffer_load_dwordx4 v{VB[i]}, s[24:27], s30 offen {NTW} lds")
        if j == NPC - 1:
            g("s_add_u32 s34, s34, 1")
            g("s_cmp_eq_u32 s34, 10")
            g(f"s_cselect_b32 s35, {(128-1280) & 0xffffffff:#x}, s38")
            g(f"s_cselect_b32 s36, {(245760-10*245760) & 0xffffffff:#x}, s37")
            g("s_cselect_b32 s34, 0, s34")
            g("s_add_u32 s28, s28, s35")
            g("s_add_u32 s30, s30, s36")

    for it in range(NS - 1):
        for j in range(NPC):
            dma_piece(it, j)

    ACC = 52
    FR = 148

    def read_list(it, ks, b):
        st = it % NS
        L = []
        for nt in range(3):
            for half in range(2):
                L.append(f"ds_read_b64_tr_b16 {vr(FR+20*b+8+4*nt+2*half,2)}, v{B0+7*st+4+nt} offset:{6144*ks+1536*half}")
            if nt < 2:
                L.append(f"ds_read_b128 {vr(FR+20*b+4*nt,4)}, v{B0+7*st+ks} offset:{4096*nt}")
        return L

    def mfmas(b, orient, first, hooks, rl=()):
        i = 0
        rl = list(rl)
        for nt in range(3):
            for mt in range(2):
                if i > 0:
                    for _ in range(2):
                        if rl:
                            g(rl.pop(0))
                if i in hooks:
                    hooks[i]()
                i += 1
                acc = vr(ACC + 16 * (3 * mt + nt), 16)
                xf = vr(FR + 20 * b + 4 * mt, 4)
                wf = vr(FR + 20 * b + 8 + 4 * nt, 4)
                c = "0" if first else acc
                if orient[nt] == "q":
                    g(f"v_mfma_f32_32x32x16_bf16 {acc}, {wf}, {xf}, {c}")
                else:
                    g(f"v_mfma_f32_32x32x16_bf16 {acc}, {xf}, {wf}, {c}")

    lv = g.newlabel("g1v")
    lm = g.newlabel("g1m")
    g("s_mul_i32 s39, s11, 6")
    g("s_add_u32 s39, s39, s17")
    g("s_cmp_ge_u32 s39, 40")
    g(f"s_cbranch_scc1 {lv}")
    g("s_cmp_eq_u32 s39, 39")
    g(f"s_cbranch_scc1 {lm}")
    for orient in ("qqq", "vvv", "qvv"):
        if orient == "vvv":
            g.label(lv)
        if orient == "qvv":
            g.label(lm)
        for it in range(NIT):
            n = NPC * (min(it + NS - 2, NIT - 1) - it)
            g(f"s_waitcnt vmcnt({n}) lgkmcnt(0)")
            g("s_barrier")
            if it in (0, 3, 6, 9):
                stamp(g, 2 + it // 3)
            pf = it + NS - 1 < NIT
            nx = it + NS - 1
            pieces = list(range(NPC)) if pf else []

            def hk(slots):
                h = {}
                for sl in slots:
                    if pieces:
                        j = pieces.pop(0)
                        h[sl] = (lambda j=j: dma_piece(nx, j))
                return h
            for ks in range(4):
                b = ks % 2
                rl = read_list(it, ks, b)
                if ks > 0 or it > 0:
                    if ks > 0:
                        g("s_waitcnt lgkmcnt(0)")
                    mfmas(1 - b, orient, it == 0 and ks == 1, hk([1, 3, 5] if ks < 2 else [2, 5]), rl)
                else:
                    for r_ in rl:
                        g(r_)
                    for j in range(3):
                        if pieces:
                            dma_piece(nx, pieces.pop(0))
        g("s_waitcnt lgkmcnt(0)")
        mfmas(1, orient, False, {})
        g.nop(16)
        stamp(g, 6)
        if "q" in orient:
            make_srd(g, 40, 8, WS_QK4, SZ_QK4)
            g("v_lshlrev_b32 v21, 14, v9")
            g("v_lshl_add_u32 v21, v8, 3, v21")
            g("s_lshl_b32 s48, s15, 9")
            g("v_add_u32 v21, s48, v21")
            g("s_lshl_b32 s48, s39, 17")
            g("s_lshl_b32 s49, s10, 10")
            g("s_add_u32 s48, s48, s49")
        if "v" in orient:
            make_srd(g, 44, 8, WS_VG, SZ_26)
            g("v_lshlrev_b32 v20, 5, v8")
            g("v_lshl_add_u32 v20, v9, 4, v20")
            g("s_mul_i32 s50, s15, 81920")
            g("v_add_u32 v20, s50, v20")
            g("s_mul_i32 s50, s10, 163840")
            g("s_lshl_b32 s51, s39, 10")
            g("s_add_u32 s50, s50, s51")
            g(f"s_sub_u32 s50, s50, {40*1024}")
        k = 0
        for nt in range(3):
            if orient[nt] == "q":
                for a in range(4):
                    g(f"s_add_u32 s49, s48, {(8*nt+2*a)*16384}")
                    for mt in range(2):
                        acc = ACC + 16 * (3 * mt + nt) + 4 * a
                        t = FR + 4 * (k % 8)
                        k += 1
                        g(f"v_cvt_pk_bf16_f32 v{t}, v{acc}, v{acc+1}")
                        g(f"v_cvt_pk_bf16_f32 v{t+1}, v{acc+2}, v{acc+3}")
                        g(f"buffer_store_dwordx2 {vr(t,2)}, v21, s[40:43], s49 offen offset:{256*mt} {STF}")
            else:
                for mt in range(2):
                    for ap in range(2):
                        g(f"s_add_u32 s51, s50, {(2*mt+ap)*20480 + nt*1024}")
                        acc = ACC + 16 * (3 * mt + nt) + 8 * ap
                        t = FR + 4 * (k % 8)
                        k += 1
                        for e in range(4):
                            g(f"v_cvt_pk_bf16_f32 v{t+e}, v{acc+2*e}, v{acc+2*e+1}")
                        g(f"buffer_store_dwordx4 {vr(t,4)}, v20, s[44:47], s51 offen {STF}")
        stamp(g, 7)
        if STAMPS: g("s_waitcnt vmcnt(0)")
        stamp_flush(g, 0, 8, 8)
        dbg_end(g, 0)
        g("s_endpgm")


def gen_k1(g):
    name = "k1_kernel"
    kernel_begin(g, name)
    lend = g.newlabel("end")
    lpf = g.newlabel("aux")
    g(f"s_cmp_ge_u32 s2, {N_G1_WG}")
    g(f"s_cbranch_scc1 {lpf}")
    gen_gemm1(g)
    g.label(lpf)
    g(f"s_cmp_ge_u32 s2, {N_G1_WG+N_AUX_WG}")
    g(f"s_cbranch_scc1 {lend}")
    stamp(g, 0)
    g("v_lshrrev_b32 v1, 6, v0")
    g(f"s_sub_u32 s3, s2, {N_G1_WG}")
    g("s_lshl_b32 s3, s3, 2")
    g("v_readfirstlane_b32 s19, v1")
    g("s_nop 3")
    g("s_add_u32 s3, s3, s19")
    gen_a1_multi(g, "s3", N_AUX_WG * 4)
    stamp(g, 1)
    if PF_LIST:
        gen_prefetch(g, N_G1_WG, N_AUX_WG, PF_LIST)
    if STAMPS:
        g("s_waitcnt vmcnt(0)")
        g(f"s_load_dwordx2 s[8:9], s[0:1], {KA['ws']}")
        g("s_waitcnt lgkmcnt(0)")
    stamp_flush(g, 0, 2, 8)
    g.label(lend)
    g("s_endpgm")
    return name


N_PF_WG = 0
PF_LIST = []
PF_SIZE = dict(k=SZ_26, v=SZ_26, ssmk=SZ_26, wo=640 * 1280, q=SZ_26)


def gen_prefetch(g, id0, nwg, names):
    for i, nm in enumerate(names):
        g(f"s_load_dwordx2 s[{4+2*i}:{5+2*i}], s[0:1], {KA[nm]}")
    g(f"s_sub_u32 s3, s2, {id0}")
    g("v_lshlrev_b32 v1, 4, v0")
    g("s_lshl_b32 s3, s3, 12")
    g("v_add_u32 v1, s3, v1")
    g("s_waitcnt lgkmcnt(0)")
    step = nwg * 4096
    for i, nm in enumerate(names):
        make_srd(g, 20, 4 + 2 * i, 0, PF_SIZE[nm])
        n = (PF_SIZE[nm] + step - 1) // step
        lp = g.newlabel("pfl")
        g("s_mov_b32 s24, 0")
        g.label(lp)
        for u in range(4):
            g(f"buffer_load_dwordx4 v[{4+4*u}:{7+4*u}], v1, s[20:23], s24 offen")
            g(f"s_add_u32 s24, s24, {step}")
        g("s_waitcnt vmcnt(24)")
        g(f"s_cmp_lt_u32 s24, {n*step}")
        g(f"s_cbranch_scc1 {lp}")


CV_COPY = 4160
CV_X = 4 * CV_COPY
N_CONV_WG = 640
CONV_PRIO = 2


def gen_conv(g):
    stamp(g, 0)
    if CONV_PRIO:
        g(f"s_setprio {CONV_PRIO}")
    g(f"s_load_dwordx4 s[4:7], s[0:1], {KA['ssmk']}")
    g(f"s_load_dwordx2 s[8:9], s[0:1], {KA['ws']}")
    g("v_lshrrev_b32 v1, 6, v0")
    g("v_and_b32 v2, 63, v0")
    g("s_nop 0")
    g("v_readfirstlane_b32 s12, v1")
    g("s_lshl_b32 s16, s3, 12")
    g("v_lshlrev_b32 v4, 4, v0")
    g("s_waitcnt lgkmcnt(0)")
    stamp(g, 1)
    g("s_lshl_b32 s18, s3, 1")
    g("s_and_b32 s18, s18, 0xfffffffc")
    g("s_load_dword s19, s[6:7], s18")
    make_srd(g, 20, 4, 0, SZ_26)
    make_srd(g, 24, 8, WS_XR, SZ_26)
    make_srd(g, 28, 8, WS_Y2T, SZ_26)
    H = 8
    X = 20
    for j in range(3):
        g(f"buffer_load_dwordx4 {vr(H+4*j,4)}, v4, s[20:23], s16 offen offset:{4*j} {NTH}")
    g(f"buffer_load_dwordx4 {vr(X,4)}, v4, s[24:27], s16 offen {NTM}")
    for i in range(4):
        g(f"v_mov_b32 v{44+i}, 0")
    g("v_cmp_gt_u32 vcc, 30, v0")
    g("s_and_saveexec_b64 s[32:33], vcc")
    g(f"ds_write_b128 v4, v[44:47] offset:{CV_X+4096}")
    g("s_mov_b64 exec, s[32:33]")
    g("v_and_b32 v6, 15, v2")
    g("v_lshrrev_b32 v7, 4, v2")
    g("v_add_u32 v32, 1, v6")
    g("v_and_b32 v33, 3, v32")
    g(f"v_mul_u32_u24 v33, {CV_COPY}, v33")
    g("v_lshrrev_b32 v32, 2, v32")
    g("v_lshl_add_u32 v33, v32, 3, v33")
    g("v_lshl_add_u32 v33, v7, 4, v33")
    g("s_lshl_b32 s35, s12, 7")
    g("v_add_u32 v3, s35, v33")
    g("v_lshlrev_b32 v32, 5, v6")
    g(f"v_sub_u32 v32, {CV_X+4064-3584}, v32")
    g("v_lshl_add_u32 v32, v7, 4, v32")
    g("v_add_u32 v5, s35, v32")
    g("s_waitcnt vmcnt(0)")
    stamp(g, 2)
    T = 24
    A, B, C = H, H + 4, H + 8
    for j in range(4):
        g(f"v_alignbyte_b32 v{T+j}, v{B+j}, v{A+j}, 2")
    for j in range(4):
        g(f"v_alignbyte_b32 v{T+4+j}, v{C+j}, v{B+j}, 2")
    g(f"ds_write_b128 v4, {vr(A,4)} offset:{0*CV_COPY+32}")
    g(f"ds_write_b128 v4, {vr(T,4)} offset:{1*CV_COPY+32}")
    g(f"ds_write_b128 v4, {vr(B,4)} offset:{2*CV_COPY+32}")
    g(f"ds_write_b128 v4, {vr(T+4,4)} offset:{3*CV_COPY+32}")
    g(f"ds_write_b128 v4, {vr(X,4)} offset:{CV_X}")
    g("v_cmp_eq_u32 vcc, 0, v0")
    g("s_and_saveexec_b64 s[32:33], vcc")
    g(f"v_lshlrev_b32 v34, 16, v{A}")
    g(f"v_alignbyte_b32 v35, v{A+1}, v{A}, 2")
    for sg in range(4):
        g(f"ds_write_b128 v4, v[44:47] offset:{sg*CV_COPY}")
    g(f"ds_write_b128 v4, v[44:47] offset:{0*CV_COPY+16}")
    g("v_mov_b32 v36, 0")
    g("v_mov_b32 v37, 0")
    g("v_mov_b32 v38, 0")
    g("v_mov_b32 v39, v34")
    g(f"ds_write_b128 v4, v[36:39] offset:{1*CV_COPY+16}")
    g("v_mov_b32 v40, 0")
    g("v_mov_b32 v41, 0")
    g("v_mov_b32 v42, 0")
    g(f"v_mov_b32 v43, v{A}")
    g(f"ds_write_b128 v4, v[40:43] offset:{2*CV_COPY+16}")
    g("v_mov_b32 v48, 0")
    g("v_mov_b32 v49, 0")
    g("v_mov_b32 v50, v34")
    g("v_mov_b32 v51, v35")
    g(f"ds_write_b128 v4, v[48:51] offset:{3*CV_COPY+16}")
    g("s_mov_b64 exec, s[32:33]")
    g("s_waitcnt lgkmcnt(0)")
    g("s_barrier")
    stamp(g, 3)
    ACC = 16
    FR = 48

    def rdA(rp, mu):
        g(f"ds_read_b64 {vr(FR+4*mu,2)}, v3 offset:{64*(8*mu+rp)}")
        g(f"ds_read_b64 {vr(FR+4*mu+2,2)}, v3 offset:{64*(8*mu+rp)+8}")

    def rdB(rp, tau):
        g(f"ds_read_b128 {vr(FR+32+4*tau,4)}, v5 offset:{64*(56-8*tau+rp)}")

    def mf(mu, tau, first=False):
        t = mu + tau
        acc = vr(ACC + 4 * t, 4)
        c = "0" if first else acc
        g(f"v_mfma_f32_16x16x32_bf16 {acc}, {vr(FR+4*mu,4)}, {vr(FR+32+4*tau,4)}, {c}")

    g("v_lshlrev_b32 v14, 5, v6")
    g("v_lshl_add_u32 v14, v7, 3, v14")
    g(f"v_sub_u32 v15, {CV_X+4088-512}, v14")
    g("s_lshl_b32 s36, s12, 10")
    g("v_subrev_u32 v15, s36, v15")
    KV = 112
    g(f"ds_read_b64 {vr(KV,2)}, v15 offset:512")
    g(f"ds_read_b64 {vr(KV+2,2)}, v15 offset:0")
    rdA(0, 0)
    for tau in range(8):
        rdB(0, tau)
    for mu in range(1, 8):
        rdA(0, mu)
    for mu in range(8):
        n = 2 * (7 - mu) + 3 * mu
        g(f"s_waitcnt lgkmcnt({min(n,15)})")
        for tau in range(8 - mu):
            mf(mu, tau, first=(mu == 0))
        rdA(1, mu)
        rdB(1, 7 - mu)
    for k in range(8):
        g(f"s_waitcnt lgkmcnt({min(3*(7-k),15)})")
        for mu in range(k + 1):
            mf(mu, 7 - k)
    g("s_barrier")
    stamp(g, 4)
    g("v_lshlrev_b32 v11, 4, v2")
    ljoin = g.newlabel("cvj")
    lw = [g.newlabel("cvw") for _ in range(4)]
    for w in range(1, 4):
        g(f"s_cmp_eq_u32 s12, {w}")
        g(f"s_cbranch_scc1 {lw[w]}")
    for w in range(4):
        g.label(lw[w])
        g.nop(4)
        for o in range(4):
            if o == w:
                continue
            j = w if w < o else w - 1
            for u in range(2):
                g(f"ds_write_b128 v11, {vr(ACC+4*(2*o+u),4)} offset:{((o*3+j)*2+u)*1024}")
        if w:
            for i in range(8):
                g(f"v_mov_b32 v{ACC+i}, v{ACC+8*w+i}")
        if w < 3:
            g(f"s_branch {ljoin}")
    g.label(ljoin)
    g("s_mul_i32 s36, s12, 6144")
    g("v_add_u32 v11, s36, v11")
    g("s_waitcnt lgkmcnt(0)")
    g("s_barrier")
    P = 48
    for j in range(6):
        g(f"ds_read_b128 {vr(P+4*j,4)}, v11 offset:{1024*j}")
    g("s_and_b32 s18, s3, 1")
    g("s_lshl_b32 s18, s18, 4")
    g("s_lshr_b32 s19, s19, s18")
    g("s_lshl_b32 s19, s19, 16")
    g("s_mov_b32 s37, 0xffff0000")
    g("s_lshl_b32 s36, s12, 10")
    g("s_add_u32 s36, s36, s16")
    U = 72
    for u in range(2):
        g(f"v_and_b32 v{U+4*u+0}, s37, v{KV+2*u+1}")
        g(f"v_lshlrev_b32 v{U+4*u+1}, 16, v{KV+2*u+1}")
        g(f"v_and_b32 v{U+4*u+2}, s37, v{KV+2*u}")
        g(f"v_lshlrev_b32 v{U+4*u+3}, 16, v{KV+2*u}")
        for r in range(4):
            g(f"v_mul_f32 v{U+4*u+r}, s19, v{U+4*u+r}")
        for r in range(4):
            g(f"v_cvt_pk_bf16_f32 v{U+4*u+r}, 0, v{U+4*u+r}")
    g("s_waitcnt lgkmcnt(0)")
    for u in range(2):
        a = ACC + 4 * u
        for j in range(3):
            for r in range(4):
                g(f"v_add_f32 v{a+r}, v{a+r}, v{P+4*(2*j+u)+r}")
        for r in range(4):
            g(f"v_cvt_pk_bf16_f32 v{a+r}, 0, v{a+r}")
        for r in range(4):
            g(f"v_add_f32 v{a+r}, v{a+r}, v{U+4*u+r}")
        g(f"v_cvt_pk_bf16_f32 v{a}, v{a}, v{a+1}")
        g(f"v_cvt_pk_bf16_f32 v{a+1}, v{a+2}, v{a+3}")
        g(f"buffer_store_dwordx2 {vr(a,2)}, v14, s[28:31], s36 offen offset:{512*u} {STF}")
    stamp(g, 5)
    if STAMPS: g("s_waitcnt vmcnt(0)")
    stamp_flush(g, 1, 6, 8)
    g("s_endpgm")


AT_K = 0
AT_V = 15360
AT_VG = 1008
AT_LDS = AT_V + 24 * AT_VG
NEG = 0xFF800000


def gen_attn(g):
    stamp(g, 0)
    g(f"s_load_dwordx2 s[8:9], s[0:1], {KA['ws']}")
    g("v_lshrrev_b32 v1, 6, v0")
    g("v_and_b32 v2, 63, v0")
    g("s_nop 0")
    g("v_readfirstlane_b32 s12, v1")
    g("s_lshl_b32 s13, s11, 7")
    g("s_sub_u32 s14, s13, 256")
    g("s_waitcnt lgkmcnt(0)")
    stamp(g, 1)
    make_srd(g, 20, 8, WS_QK4, SZ_QK4)
    make_srd(g, 24, 8, WS_VG, SZ_26)
    make_srd(g, 28, 8, WS_O4, SZ_26)
    g("s_mul_i32 s15, s10, 5")
    g("s_add_u32 s16, s15, 160")
    g("s_lshl_b32 s16, s16, 14")
    g("s_lshl_b32 s17, s14, 3")
    g("s_add_u32 s16, s16, s17")
    g("v_lshlrev_b32 v3, 4, v0")
    QF = 16
    KF = 24
    VF = 40
    M = 52
    O = 56
    S = 72
    MK = 120
    ST = 72
    lskip = g.newlabel("atk")
    g("s_cmp_eq_u32 s12, 3")
    g(f"s_cbranch_scc1 {lskip}")
    for j in range(5):
        g(f"s_add_u32 s17, s16, {16384*j}")
        g(f"buffer_load_dwordx4 {vr(ST+4*j,4)}, v3, s[20:23], s17 offen")
    g.label(lskip)
    g("v_mul_u32_u24 v4, 0x667, v0")
    g("v_lshrrev_b32 v4, 16, v4")
    g("v_mul_u32_u24 v5, 40, v4")
    g("v_sub_u32 v5, v0, v5")
    g("s_ashr_i32 s17, s14, 4")
    g("v_add_u32 v6, s17, v4")
    g("s_movk_i32 s18, 20480")
    g("v_mul_lo_u32 v6, v6, s18")
    g("s_mul_i32 s18, s10, 640")
    g("v_lshl_add_u32 v6, v5, 4, v6")
    g("v_add_u32 v6, s18, v6")
    g(f"v_mul_u32_u24 v7, {AT_VG}, v4")
    g("v_lshrrev_b32 v8, 1, v5")
    g("v_mul_u32_u24 v8, 48, v8")
    g("v_add_u32 v7, v7, v8")
    g("v_and_b32 v8, 1, v5")
    g("v_lshl_add_u32 v7, v8, 4, v7")
    g("v_cmp_gt_u32 vcc, 240, v0")
    g("s_and_saveexec_b64 s[32:33], vcc")
    for it in range(4):
        if it:
            g(f"v_add_u32 v6, {6*20480}, v6")
        g(f"buffer_load_dwordx4 {vr(ST+20+4*it,4)}, v6, s[24:27], 0 offen")
    g("s_mov_b64 exec, s[32:33]")
    g("v_and_b32 v8, 31, v2")
    g("v_lshrrev_b32 v9, 5, v2")
    g("s_lshl_b32 s17, s12, 5")
    g("s_add_u32 s38, s17, s13")
    g("v_add_u32 v10, s38, v8")
    g("v_lshlrev_b32 v10, 3, v10")
    g("v_lshl_add_u32 v11, v9, 15, v10")
    g("s_lshl_b32 s18, s15, 14")
    g(f"buffer_load_dwordx2 {vr(QF,2)}, v11, s[20:23], s18 offen")
    g("s_add_u32 s19, s18, 16384")
    g(f"buffer_load_dwordx2 {vr(QF+2,2)}, v11, s[20:23], s19 offen")
    g("s_add_u32 s19, s18, 65536")
    g(f"buffer_load_dwordx2 {vr(QF+4,2)}, v10, s[20:23], s19 offen")
    g("v_lshrrev_b32 v12, 1, v0")
    g(f"v_mul_u32_u24 v12, {AT_VG}, v12")
    g("v_and_b32 v13, 1, v0")
    g("v_lshl_add_u32 v12, v13, 4, v12")
    for i in range(4):
        g(f"v_mov_b32 v{O+i}, 0x3f803f80")
    g("v_cmp_gt_u32 vcc, 48, v0")
    g("s_and_saveexec_b64 s[32:33], vcc")
    g(f"ds_write_b128 v12, {vr(O,4)} offset:{AT_V+960}")
    g("s_mov_b64 exec, s[32:33]")
    g("v_lshlrev_b32 v13, 2, v9")
    g("v_sub_u32 v13, v8, v13")
    for r in range(16):
        c = 8 * (r >> 2) + (r & 3)
        g(f"v_cmp_gt_i32 s[{40+2*r}:{41+2*r}], {c}, v13")
    g("s_lshl_b32 s17, s12, 8")
    g("v_lshl_add_u32 v14, v8, 3, s17")
    g("v_mul_u32_u24 v15, 6144, v9")
    g("v_add_u32 v15, v15, v14")
    g("v_min_u32 v12, 20, v8")
    g("v_cmp_lt_u32 vcc, 27, v8")
    g("v_mov_b32 v13, 4")
    g("s_nop 1")
    g("v_cndmask_b32 v12, v12, v13, vcc")
    g("v_mul_u32_u24 v12, 48, v12")
    g("v_lshl_add_u32 v12, v9, 4, v12")
    g(f"s_mul_i32 s17, s12, {2*AT_VG}")
    g(f"s_add_u32 s17, s17, {AT_V}")
    g("v_add_u32 v12, s17, v12")
    g(f"v_mov_b32 v13, {NEG:#x}")
    for b in range(2):
        g(f"v_mov_b32 v{KF+8*b+6}, 0")
        g(f"v_mov_b32 v{KF+8*b+7}, 0")
    g(f"v_mov_b32 v{QF+6}, 0")
    g(f"v_mov_b32 v{QF+7}, 0")
    g("v_cmp_eq_u32 s[34:35], 1, v9")
    import struct
    c = (20 ** -0.5) * 1.4426950408889634
    cb = struct.unpack("<I", struct.pack("<f", c))[0]
    g(f"s_mov_b32 s36, {cb:#x}")
    g(f"s_mov_b32 s37, {cb:#x}")
    g(f"s_mov_b32 s39, {cb | 0x80000000:#x}")
    g(f"v_mov_b32 v{M}, 0xffff")
    g(f"v_mov_b32 v{M+1}, 0xffff0000")
    for j in range(8):
        g(f"v_cndmask_b32 v{MK+j}, 0, v{M}, s[{40+4*j}:{41+4*j}]")
        g(f"v_cndmask_b32 v{M+2}, 0, v{M+1}, s[{42+4*j}:{43+4*j}]")
        g(f"v_or_b32 v{MK+j}, v{MK+j}, v{M+2}")
    g("s_waitcnt vmcnt(3)")
    stamp(g, 2)
    lskip = g.newlabel("atk")
    g("s_cmp_eq_u32 s12, 3")
    g(f"s_cbranch_scc1 {lskip}")
    for j in range(5):
        g(f"ds_write_b128 v3, {vr(ST+4*j,4)} offset:{AT_K+3072*j}")
    g.label(lskip)
    g("v_cmp_gt_u32 vcc, 240, v0")
    g("s_and_saveexec_b64 s[32:33], vcc")
    for it in range(4):
        g(f"ds_write_b128 v7, {vr(ST+20+4*it,4)} offset:{AT_V+6*AT_VG*it}")
    g("s_mov_b64 exec, s[32:33]")
    g("s_waitcnt vmcnt(0)")
    g(f"v_cndmask_b32 v{QF+4}, v{QF+4}, 0, s[34:35]")
    g(f"v_cndmask_b32 v{QF+5}, v{QF+5}, 0, s[34:35]")
    g("s_waitcnt lgkmcnt(0)")
    g("s_barrier")
    stamp(g, 3)

    def kreads(tau, b):
        g(f"ds_read_b64 {vr(KF+8*b,2)}, v15 offset:{256*tau}")
        g(f"ds_read_b64 {vr(KF+8*b+2,2)}, v15 offset:{256*tau+3072}")
        g(f"ds_read_b64 {vr(KF+8*b+4,2)}, v14 offset:{256*tau+4*3072}")

    chunks = [[0, 8, 1], [2, 3, 4], [5, 6, 7]]
    korder = [t for c in chunks for t in c]
    vorder = []
    for c in chunks:
        for t in c:
            vorder += [2 * t, 2 * t + 1]

    def vread(i):
        g(f"ds_read_b128 {vr(VF+4*(i%3),4)}, v12 offset:{AT_VG*vorder[i]}")

    kreads(korder[0], 0)
    for ch in range(3):
        for tl in range(3):
            ki = 3 * ch + tl
            b = ki % 2
            if tl < 2:
                kreads(korder[ki + 1], 1 - b)
                g("s_waitcnt lgkmcnt(3)")
            else:
                vread(6 * ch)
                vread(6 * ch + 1)
                g("s_waitcnt lgkmcnt(2)")
            sreg = vr(S + 16 * tl, 16)
            g(f"v_mfma_f32_32x32x16_bf16 {sreg}, {vr(KF+8*b,4)}, {vr(QF,4)}, 0")
            g(f"v_mfma_f32_32x32x16_bf16 {sreg}, {vr(KF+8*b+4,4)}, {vr(QF+4,4)}, {sreg}")
        g.nop(12)
        lok = g.newlabel("atok")
        for tl in range(3):
            tau = chunks[ch][tl]
            if tau == 8:
                continue
            g(f"s_cmp_ge_u32 s38, {256-32*tau}")
            g(f"s_cbranch_scc1 {lok}")
            for r in range(16):
                g(f"v_mov_b32 v{S+16*tl+r}, v13")
        g.label(lok)
        if ch == 0:
            for r in range(16):
                g(f"v_cndmask_b32 v{S+16+r}, v{S+16+r}, v{S+r}, s[{40+2*r}:{41+2*r}]")
            lo, n = S + 16, 32
        else:
            lo, n = S, 48
        g(f"v_max3_f32 v{M+2}, v{lo}, v{lo+1}, v{lo+2}")
        g(f"v_max3_f32 v{M+3}, v{lo+3}, v{lo+4}, v{lo+5}")
        i = 6
        k = 0
        while i < n:
            g(f"v_max3_f32 v{M+2+k}, v{M+2+k}, v{lo+i}, v{lo+i+1}")
            k ^= 1
            i += 2
        g(f"v_max_f32 v{M+2}, v{M+2}, v{M+3}")
        g(f"v_mov_b32 v{M+3}, v{M+2}")
        g("s_nop 1")
        g(f"v_permlane32_swap_b32 v{M+2}, v{M+3}")
        g("s_nop 1")
        g(f"v_max_f32 v{M+2}, v{M+2}, v{M+3}")
        if ch == 0:
            g(f"v_mul_f32 v{M}, s39, v{M+2}")
            g(f"v_min_f32 v{M}, 0x7f7fffff, v{M}")
            g(f"v_mov_b32 v{M+1}, v{M}")
        else:
            g(f"v_mul_f32 v{M+2}, s39, v{M+2}")
            g(f"v_min_f32 v{M+2}, v{M+2}, v{M}")
            g(f"v_sub_f32 v{M+3}, v{M+2}, v{M}")
            g(f"v_exp_f32 v{M+3}, v{M+3}")
            g(f"v_mov_b32 v{M}, v{M+2}")
            g(f"v_mov_b32 v{M+1}, v{M+2}")
            for r in range(16):
                g(f"v_mul_f32 v{O+r}, v{O+r}, v{M+3}")
        if ch < 2:
            kreads(korder[3 * ch + 3], (3 * ch + 3) % 2)
        li = 0
        for tl in range(3):
            if ch == 0 and tl == 0:
                continue
            sb = S + 16 * tl
            for r in range(0, 16, 2):
                g(f"v_pk_fma_f32 {vr(sb+r,2)}, {vr(sb+r,2)}, s[36:37], {vr(M,2)}")
            for r in range(16):
                g(f"v_exp_f32 v{sb+r}, v{sb+r}")
            g("s_nop 0")
            for j in range(8):
                g(f"v_cvt_pk_bf16_f32 v{sb+j}, v{sb+2*j}, v{sb+2*j+1}")
            srcs = [sb]
            if ch == 0 and tl == 1:
                for j in range(8):
                    g(f"v_and_b32 v{S+j}, v{MK+j}, v{sb+j}")
                for j in range(8):
                    g(f"v_xor_b32 v{sb+j}, v{S+j}, v{sb+j}")
                srcs = [S, sb]
            for sp in srcs:
                for kp in range(2):
                    idx = 6 * ch + li
                    if li + 2 < 6:
                        vread(idx + 2)
                    extra = 3 if (ch < 2 and li < 2) else 0
                    nn = min(2, 5 - li) + extra
                    g(f"s_waitcnt lgkmcnt({nn})")
                    cc = "0" if idx == 0 else vr(O, 16)
                    if kp == 0:
                        g("s_nop 0")
                    g(f"v_mfma_f32_32x32x16_bf16 {vr(O,16)}, {vr(VF+4*(idx%3),4)}, {vr(sp+4*kp,4)}, {cc}")
                    li += 1
    g.nop(14)
    stamp(g, 5)
    g(f"v_cndmask_b32 v{M}, v{O+12}, v{O+8}, s[34:35]")
    g(f"v_rcp_f32 v{M}, v{M}")
    g("v_lshl_add_u32 v11, v9, 14, v10")
    for r in range(12):
        g(f"v_mul_f32 v{O+r}, v{O+r}, v{M}")
    for a in range(3):
        g(f"v_cvt_pk_bf16_f32 v{S+2*a}, v{O+4*a}, v{O+4*a+1}")
        g(f"v_cvt_pk_bf16_f32 v{S+2*a+1}, v{O+4*a+2}, v{O+4*a+3}")
    for a in range(3):
        g(f"s_add_u32 s19, s18, {2*a*16384}")
        if a == 2:
            g("s_andn2_b64 exec, exec, s[34:35]")
        g(f"buffer_store_dwordx2 {vr(S+2*a,2)}, v11, s[28:31], s19 offen {STF}")
    if STAMPS: g("s_waitcnt vmcnt(0)")
    stamp_flush(g, 1, 6, 8)
    dbg_end(g, 1)
    g("s_endpgm")


def gen_k2(g):
    name = "k2_kernel"
    kernel_begin(g, name)
    lat = g.newlabel("attn")
    lend = g.newlabel("end")
    g("s_cmp_ge_u32 s2, 1152")
    g(f"s_cbranch_scc1 {lend}")
    g("s_cmp_lt_u32 s2, 512")
    g(f"s_cbranch_scc1 {lat}")
    g("s_sub_u32 s3, s2, 512")
    gen_conv(g)
    g.label(lat)
    g("s_and_b32 s4, s2, 7")
    g("s_lshr_b32 s5, s2, 3")
    g("s_lshr_b32 s10, s5, 4")
    g("s_lshl_b32 s10, s10, 3")
    g("s_add_u32 s10, s10, s4")
    g("s_and_b32 s11, s5, 15")
    gen_attn(g)
    g.label(lend)
    g("s_endpgm")
    return name


G2_NS = 5
G2_STAGE = 12288


def gen_gemm2(g):
    NS = G2_NS
    NIT = 20
    stamp(g, 0)
    g(f"s_load_dwordx4 s[4:7], s[0:1], {KA['wo']}")
    g(f"s_load_dwordx2 s[8:9], s[0:1], {KA['ws']}")
    g("s_and_b32 s10, s2, 7")
    g("s_lshr_b32 s11, s2, 3")
    g("s_and_b32 s12, s11, 1")
    g("s_lshl_b32 s10, s10, 1")
    g("s_add_u32 s10, s10, s12")
    g("s_lshr_b32 s11, s11, 1")
    g("v_lshrrev_b32 v1, 6, v0")
    g("v_and_b32 v2, 63, v0")
    g("s_nop 0")
    g("v_readfirstlane_b32 s12, v1")
    g("v_lshlrev_b32 v3, 4, v2")
    g("s_lshl_b32 s14, s12, 15")
    g("v_add_u32 v3, s14, v3")
    g("v_lshrrev_b32 v4, 3, v2")
    g("s_movk_i32 s13, 1280")
    g("v_mul_lo_u32 v7, v4, s13")
    g("v_bfe_u32 v5, v2, 2, 1")
    g("v_bfe_u32 v6, v2, 4, 1")
    g("v_xor_b32 v5, v5, v6")
    g("v_lshl_add_u32 v7, v5, 6, v7")
    g("v_and_b32 v5, 3, v2")
    g("v_lshl_add_u32 v7, v5, 4, v7")
    g("s_mul_i32 s14, s12, 10240")
    g("v_add_u32 v7, s14, v7")
    g("s_lshr_b32 s15, s12, 1")
    g("s_and_b32 s16, s12, 1")
    g("v_and_b32 v8, 31, v2")
    g("v_lshrrev_b32 v9, 5, v2")
    g("s_lshl_b32 s17, s15, 9")
    g("v_lshl_add_u32 v11, v8, 3, s17")
    g("v_lshl_add_u32 v11, v9, 11, v11")
    g("v_bfe_u32 v13, v2, 2, 2")
    g("v_lshl_add_u32 v14, v9, 3, v13")
    g("v_lshlrev_b32 v14, 7, v14")
    g("v_bfe_u32 v15, v2, 4, 1")
    g("v_lshl_add_u32 v14, v15, 5, v14")
    g("v_lshl_add_u32 v14, v5, 3, v14")
    g("v_add_u32 v14, 8192, v14")
    g("v_lshrrev_b32 v15, 1, v13")
    g("v_xor_b32 v15, s16, v15")
    g("v_lshl_add_u32 v15, v15, 6, v14")
    g("s_waitcnt lgkmcnt(0)")
    stamp(g, 1)
    make_srd(g, 20, 8, WS_O4, SZ_26)
    make_srd(g, 24, 4, 0, 640 * 1280)
    g("s_lshl_b32 s28, s10, 10")
    g("s_add_u32 s29, s28, 16384")
    g("s_lshl_b32 s30, s11, 7")
    g("s_lshl_b32 s32, s12, 11")
    g("s_lshl_b32 s33, s12, 10")
    g("s_lshl_b32 s34, s11, 1")
    g("s_mul_i32 s35, s10, 7")
    g("s_add_u32 s34, s34, s35")
    g("s_mul_hi_u32 s35, s34, 0xccccccd")
    g("s_mul_i32 s35, s35, 20")
    g("s_sub_u32 s34, s34, s35")
    g("s_lshl_b32 s35, s34, 17")
    g("s_add_u32 s28, s28, s35")
    g("s_add_u32 s29, s29, s35")
    g("s_mul_i32 s35, s34, 40960")
    g("s_add_u32 s30, s30, s35")
    g(f"s_mov_b32 s37, {8*16384}")
    g(f"s_mov_b32 s31, {32*1280}")

    def dma_piece(it, j):
        base = (it % NS) * G2_STAGE
        sm, off, vo, srd, so, inc = [(32, 0, 3, 20, 28, 35), (32, 1024, 3, 20, 29, 35), (33, 8192, 7, 24, 30, 36)][j]
        if j == 0:
            g("s_add_u32 s34, s34, 1")
            g("s_cmp_eq_u32 s34, 20")
            g(f"s_cselect_b32 s35, {(8*16384-160*16384) & 0xffffffff:#x}, s37")
            g(f"s_cselect_b32 s36, {(32*1280-640*1280) & 0xffffffff:#x}, s31")
            g("s_cselect_b32 s34, 0, s34")
        g(f"s_add_u32 m0, s{sm}, {base+off}")
        g("s_nop 0")
        g(f"buffer_load_dwordx4 v{vo}, s[{srd}:{srd+3}], s{so} offen lds")
        g(f"s_add_u32 s{so}, s{so}, s{inc}")

    def issue_dma(it):
        for j in range(3):
            dma_piece(it, j)

    for it in range(NS - 1):
        issue_dma(it)
    ACC = 32
    FR = 64

    def reads(it, ks, b):
        base = (it % NS) * G2_STAGE
        for mt in range(2):
            for a in range(2):
                g(f"ds_read_b64 {vr(FR+12*b+4*mt+2*a,2)}, v11 offset:{base+4096*ks+1024*a+256*mt}")
        for half in range(2):
            g(f"ds_read_b64_tr_b16 {vr(FR+12*b+8+2*half,2)}, v15 offset:{base+2048*ks+512*half}")

    def mfmas(b, first, hooks=None):
        for mt in range(2):
            if hooks and mt in hooks:
                hooks[mt]()
            acc = vr(ACC + 16 * mt, 16)
            c = "0" if first else acc
            g(f"v_mfma_f32_32x32x16_bf16 {acc}, {vr(FR+12*b+8,4)}, {vr(FR+12*b+4*mt,4)}, {c}")

    for it in range(NIT):
        n = 3 * (min(it + NS - 2, NIT - 1) - it)
        g(f"s_waitcnt vmcnt({n}) lgkmcnt(0)")
        g("s_barrier")
        if it in (0, 5, 10, 15):
            stamp(g, 2 + it // 5)
        pf = it + NS - 1 < NIT
        nx = it + NS - 1
        reads(it, 0, 0)
        if it > 0:
            mfmas(1, False, {1: lambda: dma_piece(nx, 0)} if pf else None)
        elif pf:
            dma_piece(nx, 0)
        reads(it, 1, 1)
        if pf:
            dma_piece(nx, 1)
        g("s_waitcnt lgkmcnt(6)")
        mfmas(0, it == 0, {1: lambda: dma_piece(nx, 2)} if pf else None)
    g("s_waitcnt lgkmcnt(0)")
    mfmas(1, False)
    g("s_barrier")
    stamp(g, 6)
    g("s_mul_i32 s17, s15, 9216")
    g("s_lshl_b32 s18, s16, 6")
    g("s_add_u32 s17, s17, s18")
    g("v_mul_u32_u24 v16, 144, v8")
    g("v_lshl_add_u32 v16, v9, 3, v16")
    g("v_add_u32 v16, s17, v16")
    g.nop(10)
    k = 0
    for mt in range(2):
        for a in range(4):
            acc = ACC + 16 * mt + 4 * a
            t = FR + 2 * (k % 8)
            k += 1
            g(f"v_cvt_pk_bf16_f32 v{t}, v{acc}, v{acc+1}")
            g(f"v_cvt_pk_bf16_f32 v{t+1}, v{acc+2}, v{acc+3}")
            g(f"ds_write_b64 v16, {vr(t,2)} offset:{4608*mt+16*a}")
    make_srd(g, 36, 6, 0, 2 * SZ_26)
    g("v_lshrrev_b32 v17, 3, v0")
    g("v_and_b32 v18, 7, v0")
    g("v_mul_u32_u24 v19, 144, v17")
    g("v_lshl_add_u32 v19, v18, 4, v19")
    g("s_movk_i32 s13, 2560")
    g("v_mul_lo_u32 v20, v17, s13")
    g("v_lshl_add_u32 v20, v18, 4, v20")
    g("s_mul_i32 s40, s10, 327680")
    g("s_lshl_b32 s41, s11, 7")
    g("s_add_u32 s40, s40, s41")
    g("s_add_u32 s40, s40, 1280")
    g("s_waitcnt lgkmcnt(0)")
    g("s_barrier")
    for it in range(4):
        g(f"ds_read_b128 {vr(ACC+4*it,4)}, v19 offset:{4608*it}")
    for it in range(4):
        g(f"s_waitcnt lgkmcnt({3-it})")
        g(f"buffer_store_dwordx4 {vr(ACC+4*it,4)}, v20, s[36:39], s40 offen {NTO}")
        g(f"s_add_u32 s40, s40, {32*2560}")
    stamp(g, 7)
    if STAMPS: g("s_waitcnt vmcnt(0)")
    stamp_flush(g, 2, 8, 8)
    dbg_end(g, 2)
    g("s_endpgm")


def gen_k3(g):
    name = "k3_kernel"
    kernel_begin(g, name)
    la3 = g.newlabel("a3")
    lend = g.newlabel("end")
    g("s_cmp_ge_u32 s2, 160")
    g(f"s_cbranch_scc1 {la3}")
    gen_gemm2(g)
    g.label(la3)
    g("s_cmp_ge_u32 s2, 240")
    g(f"s_cbranch_scc1 {lend}")
    g("v_lshrrev_b32 v1, 6, v0")
    g("s_sub_u32 s3, s2, 160")
    g("s_lshl_b32 s3, s3, 2")
    g("v_readfirstlane_b32 s19, v1")
    g("s_nop 3")
    g("s_add_u32 s3, s3, s19")
    gen_a3(g, "s3")
    g.label(lend)
    g("s_endpgm")
    return name


def main(path):
    g = G()
    k2_lds = AT_LDS
    g.raw(f"; @launch kernel=k1_kernel grid=({N_G1_WG+N_AUX_WG},1,1) block=(256,1,1) lds={G1_NS*G1_STAGE}")
    g.raw(f"; @launch kernel=k2_kernel grid=({N_CONV_WG+512},1,1) block=(256,1,1) lds={k2_lds}")
    g.raw(f"; @launch kernel=k3_kernel grid=(240,1,1) block=(256,1,1) lds={G2_NS*G2_STAGE}")
    g.raw('.amdgcn_target "amdgcn-amd-amdhsa--gfx950"')
    g.raw(".text")
    gen_k1(g)
    gen_k2(g)
    gen_k3(g)
    g.raw('.section .rodata,"a"')
    g.raw(".p2align 6")
    kernel_desc(g, "k1_kernel", 256)
    g.raw(".p2align 6")
    kernel_desc(g, "k2_kernel", 128)
    g.raw(".p2align 6")
    kernel_desc(g, "k3_kernel", 128)
    open(path, "w").write("\n".join(g.lines) + "\n")


if __name__ == "__main__":
    if "--stamps" in sys.argv:
        STAMPS = True
        sys.argv.remove("--stamps")
    for a in list(sys.argv[1:]):
        if "=" in a:
            k_, v_ = a.split("=")
            globals()[k_] = eval(v_)
            sys.argv.remove(a)
    main(sys.argv[1] if len(sys.argv) > 1 else f"cdna_kernels/{NAME}.s")
```

```python
import sys

NAME = "concat_heads__ssm_conv_h3__sliding_block__prompt"

WS_XR = 0x000000
WS_QK4 = 0x280000
WS_VG = 0x780000
WS_O4 = 0xA00000
WS_Y2T = 0xC80000
SZ_26 = 2621440
SZ_QK4 = 5242880

KA = dict(q=0, k=8, v=16, shift=24, ssmk=32, ssmD=40, x=48, wqkv=56, wo=64, out=72, dbg=80, ws=88)


class G:
    def __init__(self):
        self.lines = []
        self.uid = 0

    def __call__(self, s):
        self.lines.append("    " + s)

    def label(self, name):
        self.lines.append(name + ":")

    def raw(self, s):
        self.lines.append(s)

    def newlabel(self, p="L"):
        self.uid += 1
        return f".{p}_{self.uid}"

    def nop(self, n):
        while n > 0:
            k = min(n, 16)
            self(f"s_nop {k-1}")
            n -= k


def vr(a, n=1):
    return f"v{a}" if n == 1 else f"v[{a}:{a+n-1}]"


def sr(a, n=1):
    return f"s{a}" if n == 1 else f"s[{a}:{a+n-1}]"


def make_srd(g, d, ptr, off, size):
    if off:
        g(f"s_add_u32 s{d}, s{ptr}, {off:#x}")
        g(f"s_addc_u32 s{d+1}, s{ptr+1}, 0")
    else:
        g(f"s_mov_b32 s{d}, s{ptr}")
        g(f"s_mov_b32 s{d+1}, s{ptr+1}")
    g(f"s_mov_b32 s{d+2}, {size:#x}")
    g(f"s_mov_b32 s{d+3}, 0x00020000")


STAMPS = False
STF = 'sc1'
NTI = ''
NTW = ''
NTO = 'sc1'
NTM = ''
NTH = ''
WS_ST = 0x1000000


def stamp(g, idx):
    if not STAMPS:
        return
    g("s_memrealtime s[98:99]")
    g("s_waitcnt lgkmcnt(0)")
    g(f"s_mov_b32 s{80+idx}, s98")


def stamp_flush(g, kidx, n, wsptr):
    if not STAMPS:
        return
    stamp(g, n)
    n += 1
    g("s_mov_b64 exec, -1")
    g(f"s_add_u32 s96, s{wsptr}, {WS_ST + kidx*0x40000:#x}")
    g(f"s_addc_u32 s97, s{wsptr+1}, 0")
    g("s_mov_b32 s98, 0x40000")
    g("s_mov_b32 s99, 0x00020000")
    g("v_cmp_eq_u32 vcc, 0, v0")
    g("s_and_saveexec_b64 s[94:95], vcc")
    g("s_lshl_b32 s94, s2, 6")
    g("v_mov_b32 v1, s94")
    for i in range(n):
        g(f"v_mov_b32 v2, s{80+i}")
        g(f"buffer_store_dword v2, v1, s[96:99], 0 offen offset:{4*i}")


DBGT = False


def kernel_begin(g, name):
    g.raw(f".globl {name}")
    g.raw(".p2align 8")
    g.raw(f".type {name},@function")
    g.label(name)
    if DBGT:
        g("s_memrealtime s[72:73]")
        g("s_memtime s[74:75]")


def dbg_end(g, kidx):
    if not DBGT:
        return
    l = g.newlabel("dbg")
    g("s_cmp_lg_u32 s2, 0")
    g(f"s_cbranch_scc1 {l}")
    g("s_waitcnt vmcnt(0)")
    g("s_memrealtime s[76:77]")
    g("s_memtime s[78:79]")
    g(f"s_load_dwordx2 s[84:85], s[0:1], {KA['dbg']}")
    g("s_waitcnt lgkmcnt(0)")
    g("s_mov_b32 s86, 256")
    g("s_mov_b32 s87, 0x00020000")
    g("s_mov_b64 exec, 1")
    g("v_mov_b32 v1, 0")
    for i, v in enumerate([str(100 + kidx), "s72", "s76", "s74", "s78"]):
        g(f"v_mov_b32 v2, {v}")
        g(f"buffer_store_dword v2, v1, s[84:87], 0 offen offset:{4*i}")
    g.label(l)


def kernel_desc(g, name, vgpr, sgpr=102):
    acc = (vgpr + 3) // 4 * 4
    g.raw(f".amdhsa_kernel {name}")
    g.raw(f"  .amdhsa_next_free_vgpr {vgpr}")
    g.raw(f"  .amdhsa_next_free_sgpr {sgpr}")
    g.raw(f"  .amdhsa_accum_offset {acc}")
    g.raw("  .amdhsa_group_segment_fixed_size 0")
    g.raw("  .amdhsa_kernarg_size 96")
    g.raw("  .amdhsa_user_sgpr_count 2")
    g.raw("  .amdhsa_user_sgpr_kernarg_segment_ptr 1")
    g.raw("  .amdhsa_system_sgpr_workgroup_id_x 1")
    g.raw("  .amdhsa_float_denorm_mode_32 3")
    g.raw(".end_amdhsa_kernel")


A1_RL = 4
N_A1_WG = 2048 // (8 * A1_RL) * 10 // 4


def gen_a1_multi(g, s_wv, nwv):
    RL = A1_RL
    NR = RL + 3
    NU = (640 + nwv - 1) // nwv
    g(f"s_load_dwordx4 s[4:7], s[0:1], {KA['k']}")
    g(f"s_load_dwordx2 s[8:9], s[0:1], {KA['shift']}")
    g(f"s_load_dwordx2 s[10:11], s[0:1], {KA['ws']}")
    g("v_and_b32 v1, 63, v0")
    g("v_and_b32 v2, 7, v1")
    g("v_lshrrev_b32 v3, 3, v1")
    g(f"v_mul_u32_u24 v3, {RL}, v3")
    g("v_mov_b32 v9, 0x80000000")
    g("s_waitcnt lgkmcnt(0)")
    make_srd(g, 20, 4, 0, SZ_26)
    make_srd(g, 24, 6, 0, SZ_26)
    make_srd(g, 28, 8, 0, 5120)
    make_srd(g, 32, 10, WS_XR, SZ_26)
    RAW = 64
    PER = 4 * NR + 4 * RL + 16
    for u in range(NU):
        g(f"s_add_u32 s12, {s_wv}, {u*nwv}")
        g("s_mul_hi_u32 s13, s12, 0x1999999a")
        g("s_mul_i32 s14, s13, 10")
        g("s_sub_u32 s14, s12, s14")
        g(f"s_mul_i32 s13, s13, {8*RL}")
        g("v_add_u32 v4, s13, v3")
        g("s_lshl_b32 s15, s14, 6")
        g("v_lshl_add_u32 v5, v2, 3, s15")
        g("v_mul_u32_u24 v6, 1280, v4")
        g("v_lshl_add_u32 v6, v5, 1, v6")
        g("v_subrev_u32 v8, 3840, v6")
        g("v_cmp_eq_u32 vcc, 0, v4")
        g("v_lshlrev_b32 v7, 3, v5")
        g(f"v_lshlrev_b32 v{10+u}, 12, v5")
        g("v_cndmask_b32 v8, v8, v9, vcc")
        g(f"v_sub_u32 v4, {2048-RL}, v4")
        g(f"v_lshl_add_u32 v{10+u}, v4, 1, v{10+u}")
        KR = RAW + PER * u
        VR = KR + 4 * NR
        WR = VR + 4 * RL
        for r in range(3):
            g(f"buffer_load_dwordx4 {vr(KR+4*r,4)}, v8, s[20:23], 0 offen offset:{1280*r} {NTI}")
        for r in range(RL):
            g(f"buffer_load_dwordx4 {vr(KR+12+4*r,4)}, v6, s[20:23], 0 offen offset:{1280*r} {NTI}")
        for j in range(4):
            g(f"buffer_load_dwordx4 {vr(WR+4*j,4)}, v7, s[28:31], 0 offen offset:{16*j}")
        for r in range(RL):
            g(f"buffer_load_dwordx4 {vr(VR+4*r,4)}, v6, s[24:27], 0 offen offset:{1280*r} {NTI}")
    g("s_mov_b32 s17, 0xffff0000")
    NL = NR + 4 + RL
    KF = 16
    WF = KF + 12
    T = WF + 4
    OUT = T + 12
    PK = OUT + 8
    NP = RL // 2
    ldone = g.newlabel("a1done")
    for u in range(NU):
        if (u + 1) * nwv > 640:
            g(f"s_add_u32 s12, {s_wv}, {u*nwv}")
            g("s_cmp_ge_u32 s12, 640")
            g(f"s_cbranch_scc1 {ldone}")
        g(f"s_waitcnt vmcnt({NL*(NU-1-u) + 8*u})")
        KR = RAW + PER * u
        VR = KR + 4 * NR
        WR = VR + 4 * RL
        for ch in range(8):
            j, hi = ch // 2, ch % 2
            for r in range(NR):
                src = KR + 4 * r + j
                if hi:
                    g(f"v_and_b32 v{KF+r}, s17, v{src}")
                else:
                    g(f"v_lshlrev_b32 v{KF+r}, 16, v{src}")
            g(f"v_lshlrev_b32 v{WF+0}, 16, v{WR+2*ch}")
            g(f"v_and_b32 v{WF+1}, s17, v{WR+2*ch}")
            g(f"v_lshlrev_b32 v{WF+2}, 16, v{WR+2*ch+1}")
            g(f"v_and_b32 v{WF+3}, s17, v{WR+2*ch+1}")
            for s0 in range(0, RL, 2):
                for uu in range(2):
                    sx = s0 + uu
                    t = T + 6 * uu
                    g(f"v_mul_f32 v{t}, v{KF+sx}, v{WF+3}")
                    g(f"v_mul_f32 v{t+1}, v{KF+sx+1}, v{WF+2}")
                    g(f"v_mul_f32 v{t+2}, v{KF+sx+2}, v{WF+1}")
                    g(f"v_mul_f32 v{t+3}, v{KF+sx+3}, v{WF+0}")
                    src = VR + 4 * sx + j
                    if hi:
                        g(f"v_and_b32 v{t+4}, s17, v{src}")
                    else:
                        g(f"v_lshlrev_b32 v{t+4}, 16, v{src}")
                for uu in range(2):
                    t = T + 6 * uu
                    for q in range(4):
                        g(f"v_cvt_pk_bf16_f32 v{t+q}, 0, v{t+q}")
                for q in range(1, 4):
                    for uu in range(2):
                        t = T + 6 * uu
                        g(f"v_add_f32 v{t}, v{t}, v{t+q}")
                    for uu in range(2):
                        t = T + 6 * uu
                        g(f"v_cvt_pk_bf16_f32 v{t}, 0, v{t}")
                for uu in range(2):
                    t = T + 6 * uu
                    g(f"v_mul_f32 v{OUT+s0+uu}, v{t}, v{t+4}")
            pk = PK + NP * (ch % 4)
            for e in range(NP):
                g(f"v_cvt_pk_bf16_f32 v{pk+e}, v{OUT+RL-1-2*e}, v{OUT+RL-2-2*e}")
            g(f"s_mov_b32 s18, {4096*ch}")
            g(f"buffer_store_dwordx{NP} {vr(pk,NP)}, v{10+u}, s[32:35], s18 offen {STF}")
    g.label(ldone)
    return RAW + PER * NU


def gen_a3(g, s_unit):
    stamp(g, 0)
    g(f"s_load_dwordx2 s[4:5], s[0:1], {KA['q']}")
    g(f"s_load_dwordx2 s[6:7], s[0:1], {KA['out']}")
    g(f"s_load_dwordx2 s[10:11], s[0:1], {KA['ws']}")
    g(f"s_mul_hi_u32 s12, {s_unit}, 0x1999999a")
    g(f"s_mul_i32 s13, s12, 10")
    g(f"s_sub_u32 s13, {s_unit}, s13")
    g("v_and_b32 v1, 63, v0")
    g("v_and_b32 v2, 7, v1")
    g("v_lshrrev_b32 v3, 3, v1")
    g("s_lshl_b32 s14, s12, 6")
    g("v_lshl_add_u32 v4, v3, 3, s14")
    g("s_lshl_b32 s15, s13, 6")
    g("v_lshl_add_u32 v5, v2, 3, s15")
    g("s_movk_i32 s16, 1280")
    g("v_mul_lo_u32 v6, v4, s16")
    g("v_lshl_add_u32 v7, v5, 1, v6")
    g("v_add_u32 v8, 5120, v7")
    g("v_lshlrev_b32 v6, 1, v6")
    g("v_lshl_add_u32 v9, v5, 1, v6")
    g("v_lshlrev_b32 v10, 12, v5")
    g("v_lshl_add_u32 v10, v4, 1, v10")
    g("s_waitcnt lgkmcnt(0)")
    stamp(g, 1)
    make_srd(g, 20, 4, 0, SZ_26)
    make_srd(g, 24, 6, 0, 2 * SZ_26)
    make_srd(g, 28, 10, WS_Y2T, SZ_26)
    QR = 16
    YR = 48
    for r in range(8):
        vo = "v7" if r < 4 else "v8"
        g(f"buffer_load_dwordx4 {vr(QR+4*r,4)}, {vo}, s[20:23], 0 offen offset:{1280*(r%4)} {NTI}")
    for ch in range(8):
        g(f"s_mov_b32 s18, {4096*ch}")
        g(f"buffer_load_dwordx4 {vr(YR+4*ch,4)}, v10, s[28:31], s18 offen {NTM}")
    g("s_mov_b32 s17, 0xffff0000")
    g("s_waitcnt vmcnt(0)")
    stamp(g, 2)
    T = 80
    PK = 96
    for s in range(8):
        for j in range(4):
            t = T + 4 * (j % 2)
            g(f"v_lshlrev_b32 v{t}, 16, v{QR+4*s+j}")
            g(f"v_and_b32 v{t+1}, s17, v{QR+4*s+j}")
            for u in range(2):
                src = YR + 4 * (2 * j + u) + s // 2
                if s % 2:
                    g(f"v_and_b32 v{t+2+u}, s17, v{src}")
                else:
                    g(f"v_lshlrev_b32 v{t+2+u}, 16, v{src}")
            g(f"v_mul_f32 v{t}, v{t}, v{t+2}")
            g(f"v_mul_f32 v{t+1}, v{t+1}, v{t+3}")
            g(f"v_cvt_pk_bf16_f32 v{PK+4*s+j}, v{t}, v{t+1}")
    for s in range(8):
        g(f"s_mov_b32 s18, {2560*s}")
        g(f"buffer_store_dwordx4 {vr(PK+4*s,4)}, v9, s[24:27], s18 offen {NTO}")
    stamp(g, 3)
    if STAMPS: g("s_waitcnt vmcnt(0)")
    stamp_flush(g, 2, 4, 10)
    g("s_endpgm")


G1_NS = 3
G1_STAGE = 16384 + 24576
N_G1_WG = 160
N_AUX_WG = 96


def gen_gemm1(g):
    NS = G1_NS
    NIT = 10
    NPC = 10
    stamp(g, 0)
    g(f"s_load_dwordx4 s[4:7], s[0:1], {KA['x']}")
    g(f"s_load_dwordx2 s[8:9], s[0:1], {KA['ws']}")
    g("s_and_b32 s12, s2, 3")
    g("s_bfe_u32 s13, s2, 0x10002")
    g("s_lshr_b32 s14, s2, 3")
    g("s_lshl_b32 s10, s12, 2")
    g("s_and_b32 s15, s14, 3")
    g("s_add_u32 s10, s10, s15")
    g("s_mul_i32 s11, s13, 5")
    g("s_lshr_b32 s15, s14, 2")
    g("s_add_u32 s11, s11, s15")
    g("v_lshrrev_b32 v1, 6, v0")
    g("v_and_b32 v2, 63, v0")
    g("s_nop 0")
    g("v_readfirstlane_b32 s12, v1")
    g("v_lshrrev_b32 v3, 3, v2")
    g("v_mul_u32_u24 v3, 1280, v3")
    g("v_lshrrev_b32 v4, 4, v2")
    g("v_and_b32 v5, 7, v2")
    g("v_xor_b32 v6, v5, v4")
    g("v_xor_b32 v7, 4, v6")
    g("s_mul_i32 s14, s12, 40960")
    g("v_add_u32 v3, s14, v3")
    g("v_lshl_add_u32 v6, v6, 4, v3")
    g("v_lshl_add_u32 v7, v7, 4, v3")
    g("s_mul_i32 s14, s12, 384")
    VB = [16, 17, 18, 19, 20, 21]
    for i in range(6):
        g(f"v_add_u32 v8, s14, v2")
        if i:
            g(f"v_add_u32 v8, {64*i}, v8")
        g("v_mul_u32_u24 v9, 0xaab, v8")
        g("v_lshrrev_b32 v9, 16, v9")
        g("v_mul_u32_u24 v10, 24, v9")
        g("v_sub_u32 v10, v8, v10")
        g("v_bfe_u32 v11, v9, 1, 1")
        g("v_lshlrev_b32 v11, 2, v11")
        g("v_xor_b32 v10, v10, v11")
        g("v_mul_u32_u24 v9, 3840, v9")
        g(f"v_lshl_add_u32 v{VB[i]}, v10, 4, v9")
    g("s_lshr_b32 s15, s12, 1")
    g("s_and_b32 s16, s12, 1")
    g("v_and_b32 v8, 31, v2")
    g("v_lshrrev_b32 v9, 5, v2")
    g("v_bfe_u32 v10, v8, 1, 3")
    g("v_xor_b32 v10, v9, v10")
    g("s_lshl_b32 s17, s15, 13")
    g("v_lshl_add_u32 v11, v8, 7, s17")
    B0 = 22
    for ks in range(4):
        g(f"v_xor_b32 v12, {2*ks}, v10")
        g(f"v_lshl_add_u32 v{B0+ks}, v12, 4, v11")
    g("v_bfe_u32 v13, v2, 2, 2")
    g("v_lshl_add_u32 v14, v9, 3, v13")
    g("v_mul_u32_u24 v14, 384, v14")
    g("v_and_b32 v15, 1, v4")
    g("v_lshl_add_u32 v14, v15, 5, v14")
    g("v_and_b32 v15, 3, v2")
    g("v_lshl_add_u32 v14, v15, 3, v14")
    g("v_add_u32 v14, 16384, v14")
    g("v_lshrrev_b32 v13, 1, v13")
    g("s_mul_i32 s17, s16, 3")
    for nt in range(3):
        g(f"s_add_u32 s18, s17, {nt}")
        g("v_xor_b32 v15, s18, v13")
        g(f"v_lshl_add_u32 v{B0+4+nt}, v15, 6, v14")
    for st in range(1, NS):
        for i in range(7):
            g(f"v_add_u32 v{B0+7*st+i}, {st*G1_STAGE}, v{B0+i}")
    assert B0 + 7 * NS <= 52
    g("s_waitcnt lgkmcnt(0)")
    stamp(g, 1)
    make_srd(g, 20, 4, 0, SZ_26)
    make_srd(g, 24, 6, 0, 640 * 3840)
    g("s_mul_i32 s28, s10, 163840")
    g("s_mul_i32 s30, s11, 384")
    g("s_lshl_b32 s32, s12, 12")
    g("s_mul_i32 s33, s12, 6144")
    g("s_and_b32 s34, s10, 3")
    g("s_mul_i32 s34, s34, 5")
    g("s_lshr_b32 s34, s34, 1")
    g("s_mul_i32 s35, s11, 3")
    g("s_add_u32 s34, s34, s35")
    g("s_lshr_b32 s35, s10, 2")
    g("s_add_u32 s34, s34, s35")
    g("s_mul_hi_u32 s35, s34, 0x1999999a")
    g("s_mul_i32 s35, s35, 10")
    g("s_sub_u32 s34, s34, s35")
    g("s_lshl_b32 s35, s34, 7")
    g("s_add_u32 s28, s28, s35")
    g("s_mul_i32 s35, s34, 245760")
    g("s_add_u32 s30, s30, s35")
    g("s_mov_b32 s37, 245760")
    g("s_movk_i32 s38, 128")

    def dma_piece(it, j):
        base = (it % NS) * G1_STAGE
        if j < 4:
            g(f"s_add_u32 m0, s32, {base + 1024*j}")
            if j:
                g(f"s_add_u32 s29, s28, {10240*j}")
            else:
                g("s_nop 0")
            g(f"buffer_load_dwordx4 v{6 + (j & 1)}, s[20:23], s{29 if j else 28} offen {NTW} lds")
        else:
            i = j - 4
            g(f"s_add_u32 m0, s33, {base + 16384 + 1024*i}")
            g("s_nop 0")
            g(f"buffer_load_dwordx4 v{VB[i]}, s[24:27], s30 offen {NTW} lds")
        if j == NPC - 1:
            g("s_add_u32 s34, s34, 1")
            g("s_cmp_eq_u32 s34, 10")
            g(f"s_cselect_b32 s35, {(128-1280) & 0xffffffff:#x}, s38")
            g(f"s_cselect_b32 s36, {(245760-10*245760) & 0xffffffff:#x}, s37")
            g("s_cselect_b32 s34, 0, s34")
            g("s_add_u32 s28, s28, s35")
            g("s_add_u32 s30, s30, s36")

    for it in range(NS - 1):
        for j in range(NPC):
            dma_piece(it, j)

    ACC = 52
    FR = 148

    def read_list(it, ks, b):
        st = it % NS
        L = []
        for nt in range(3):
            for half in range(2):
                L.append(f"ds_read_b64_tr_b16 {vr(FR+20*b+8+4*nt+2*half,2)}, v{B0+7*st+4+nt} offset:{6144*ks+1536*half}")
            if nt < 2:
                L.append(f"ds_read_b128 {vr(FR+20*b+4*nt,4)}, v{B0+7*st+ks} offset:{4096*nt}")
        return L

    def mfmas(b, orient, first, hooks, rl=()):
        i = 0
        rl = list(rl)
        for nt in range(3):
            for mt in range(2):
                if i > 0:
                    for _ in range(2):
                        if rl:
                            g(rl.pop(0))
                if i in hooks:
                    hooks[i]()
                i += 1
                acc = vr(ACC + 16 * (3 * mt + nt), 16)
                xf = vr(FR + 20 * b + 4 * mt, 4)
                wf = vr(FR + 20 * b + 8 + 4 * nt, 4)
                c = "0" if first else acc
                if orient[nt] == "q":
                    g(f"v_mfma_f32_32x32x16_bf16 {acc}, {wf}, {xf}, {c}")
                else:
                    g(f"v_mfma_f32_32x32x16_bf16 {acc}, {xf}, {wf}, {c}")

    lv = g.newlabel("g1v")
    lm = g.newlabel("g1m")
    g("s_mul_i32 s39, s11, 6")
    g("s_add_u32 s39, s39, s17")
    g("s_cmp_ge_u32 s39, 40")
    g(f"s_cbranch_scc1 {lv}")
    g("s_cmp_eq_u32 s39, 39")
    g(f"s_cbranch_scc1 {lm}")
    for orient in ("qqq", "vvv", "qvv"):
        if orient == "vvv":
            g.label(lv)
        if orient == "qvv":
            g.label(lm)
        for it in range(NIT):
            n = NPC * (min(it + NS - 2, NIT - 1) - it)
            g(f"s_waitcnt vmcnt({n}) lgkmcnt(0)")
            g("s_barrier")
            if it in (0, 3, 6, 9):
                stamp(g, 2 + it // 3)
            pf = it + NS - 1 < NIT
            nx = it + NS - 1
            pieces = list(range(NPC)) if pf else []

            def hk(slots):
                h = {}
                for sl in slots:
                    if pieces:
                        j = pieces.pop(0)
                        h[sl] = (lambda j=j: dma_piece(nx, j))
                return h
            for ks in range(4):
                b = ks % 2
                rl = read_list(it, ks, b)
                if ks > 0 or it > 0:
                    if ks > 0:
                        g("s_waitcnt lgkmcnt(0)")
                    mfmas(1 - b, orient, it == 0 and ks == 1, hk([1, 3, 5] if ks < 2 else [2, 5]), rl)
                else:
                    for r_ in rl:
                        g(r_)
                    for j in range(3):
                        if pieces:
                            dma_piece(nx, pieces.pop(0))
        g("s_waitcnt lgkmcnt(0)")
        mfmas(1, orient, False, {})
        g.nop(16)
        stamp(g, 6)
        if "q" in orient:
            make_srd(g, 40, 8, WS_QK4, SZ_QK4)
            g("v_lshlrev_b32 v21, 14, v9")
            g("v_lshl_add_u32 v21, v8, 3, v21")
            g("s_lshl_b32 s48, s15, 9")
            g("v_add_u32 v21, s48, v21")
            g("s_lshl_b32 s48, s39, 17")
            g("s_lshl_b32 s49, s10, 10")
            g("s_add_u32 s48, s48, s49")
        if "v" in orient:
            make_srd(g, 44, 8, WS_VG, SZ_26)
            g("v_lshlrev_b32 v20, 5, v8")
            g("v_lshl_add_u32 v20, v9, 4, v20")
            g("s_mul_i32 s50, s15, 81920")
            g("v_add_u32 v20, s50, v20")
            g("s_mul_i32 s50, s10, 163840")
            g("s_lshl_b32 s51, s39, 10")
            g("s_add_u32 s50, s50, s51")
            g(f"s_sub_u32 s50, s50, {40*1024}")
        k = 0
        for nt in range(3):
            if orient[nt] == "q":
                for a in range(4):
                    g(f"s_add_u32 s49, s48, {(8*nt+2*a)*16384}")
                    for mt in range(2):
                        acc = ACC + 16 * (3 * mt + nt) + 4 * a
                        t = FR + 4 * (k % 8)
                        k += 1
                        g(f"v_cvt_pk_bf16_f32 v{t}, v{acc}, v{acc+1}")
                        g(f"v_cvt_pk_bf16_f32 v{t+1}, v{acc+2}, v{acc+3}")
                        g(f"buffer_store_dwordx2 {vr(t,2)}, v21, s[40:43], s49 offen offset:{256*mt} {STF}")
            else:
                for mt in range(2):
                    for ap in range(2):
                        g(f"s_add_u32 s51, s50, {(2*mt+ap)*20480 + nt*1024}")
                        acc = ACC + 16 * (3 * mt + nt) + 8 * ap
                        t = FR + 4 * (k % 8)
                        k += 1
                        for e in range(4):
                            g(f"v_cvt_pk_bf16_f32 v{t+e}, v{acc+2*e}, v{acc+2*e+1}")
                        g(f"buffer_store_dwordx4 {vr(t,4)}, v20, s[44:47], s51 offen {STF}")
        stamp(g, 7)
        if STAMPS: g("s_waitcnt vmcnt(0)")
        stamp_flush(g, 0, 8, 8)
        dbg_end(g, 0)
        g("s_endpgm")


def gen_k1(g):
    name = "k1_kernel"
    kernel_begin(g, name)
    lend = g.newlabel("end")
    lpf = g.newlabel("aux")
    g(f"s_cmp_ge_u32 s2, {N_G1_WG}")
    g(f"s_cbranch_scc1 {lpf}")
    gen_gemm1(g)
    g.label(lpf)
    g(f"s_cmp_ge_u32 s2, {N_G1_WG+N_AUX_WG}")
    g(f"s_cbranch_scc1 {lend}")
    stamp(g, 0)
    g("v_lshrrev_b32 v1, 6, v0")
    g(f"s_sub_u32 s3, s2, {N_G1_WG}")
    g("s_lshl_b32 s3, s3, 2")
    g("v_readfirstlane_b32 s19, v1")
    g("s_nop 3")
    g("s_add_u32 s3, s3, s19")
    gen_a1_multi(g, "s3", N_AUX_WG * 4)
    stamp(g, 1)
    if PF_LIST:
        gen_prefetch(g, N_G1_WG, N_AUX_WG, PF_LIST)
    if STAMPS:
        g("s_waitcnt vmcnt(0)")
        g(f"s_load_dwordx2 s[8:9], s[0:1], {KA['ws']}")
        g("s_waitcnt lgkmcnt(0)")
    stamp_flush(g, 0, 2, 8)
    g.label(lend)
    g("s_endpgm")
    return name


N_PF_WG = 0
PF_LIST = ['ssmk', 'wo', 'q']
PF_SIZE = dict(k=SZ_26, v=SZ_26, ssmk=SZ_26, wo=640 * 1280, q=SZ_26)


def gen_prefetch(g, id0, nwg, names):
    for i, nm in enumerate(names):
        g(f"s_load_dwordx2 s[{4+2*i}:{5+2*i}], s[0:1], {KA[nm]}")
    g(f"s_sub_u32 s3, s2, {id0}")
    g("v_lshlrev_b32 v1, 4, v0")
    g("s_lshl_b32 s3, s3, 12")
    g("v_add_u32 v1, s3, v1")
    g("s_waitcnt lgkmcnt(0)")
    step = nwg * 4096
    for i, nm in enumerate(names):
        make_srd(g, 20, 4 + 2 * i, 0, PF_SIZE[nm])
        n = (PF_SIZE[nm] + step - 1) // step
        lp = g.newlabel("pfl")
        g("s_mov_b32 s24, 0")
        g.label(lp)
        for u in range(4):
            g(f"buffer_load_dwordx4 v[{4+4*u}:{7+4*u}], v1, s[20:23], s24 offen")
            g(f"s_add_u32 s24, s24, {step}")
        g("s_waitcnt vmcnt(24)")
        g(f"s_cmp_lt_u32 s24, {n*step}")
        g(f"s_cbranch_scc1 {lp}")


CV_COPY = 4160
CV_X = 4 * CV_COPY
N_CONV_WG = 640
CONV_PRIO = 2


def gen_conv(g):
    stamp(g, 0)
    if CONV_PRIO:
        g(f"s_setprio {CONV_PRIO}")
    g(f"s_load_dwordx4 s[4:7], s[0:1], {KA['ssmk']}")
    g(f"s_load_dwordx2 s[8:9], s[0:1], {KA['ws']}")
    g("v_lshrrev_b32 v1, 6, v0")
    g("v_and_b32 v2, 63, v0")
    g("s_nop 0")
    g("v_readfirstlane_b32 s12, v1")
    g("s_lshl_b32 s16, s3, 12")
    g("v_lshlrev_b32 v4, 4, v0")
    g("s_waitcnt lgkmcnt(0)")
    stamp(g, 1)
    g("s_lshl_b32 s18, s3, 1")
    g("s_and_b32 s18, s18, 0xfffffffc")
    g("s_load_dword s19, s[6:7], s18")
    make_srd(g, 20, 4, 0, SZ_26)
    make_srd(g, 24, 8, WS_XR, SZ_26)
    make_srd(g, 28, 8, WS_Y2T, SZ_26)
    H = 8
    X = 20
    for j in range(3):
        g(f"buffer_load_dwordx4 {vr(H+4*j,4)}, v4, s[20:23], s16 offen offset:{4*j} {NTH}")
    g(f"buffer_load_dwordx4 {vr(X,4)}, v4, s[24:27], s16 offen {NTM}")
    for i in range(4):
        g(f"v_mov_b32 v{44+i}, 0")
    g("v_cmp_gt_u32 vcc, 30, v0")
    g("s_and_saveexec_b64 s[32:33], vcc")
    g(f"ds_write_b128 v4, v[44:47] offset:{CV_X+4096}")
    g("s_mov_b64 exec, s[32:33]")
    g("v_and_b32 v6, 15, v2")
    g("v_lshrrev_b32 v7, 4, v2")
    g("v_add_u32 v32, 1, v6")
    g("v_and_b32 v33, 3, v32")
    g(f"v_mul_u32_u24 v33, {CV_COPY}, v33")
    g("v_lshrrev_b32 v32, 2, v32")
    g("v_lshl_add_u32 v33, v32, 3, v33")
    g("v_lshl_add_u32 v33, v7, 4, v33")
    g("s_lshl_b32 s35, s12, 7")
    g("v_add_u32 v3, s35, v33")
    g("v_lshlrev_b32 v32, 5, v6")
    g(f"v_sub_u32 v32, {CV_X+4064-3584}, v32")
    g("v_lshl_add_u32 v32, v7, 4, v32")
    g("v_add_u32 v5, s35, v32")
    g("s_waitcnt vmcnt(0)")
    stamp(g, 2)
    T = 24
    A, B, C = H, H + 4, H + 8
    for j in range(4):
        g(f"v_alignbyte_b32 v{T+j}, v{B+j}, v{A+j}, 2")
    for j in range(4):
        g(f"v_alignbyte_b32 v{T+4+j}, v{C+j}, v{B+j}, 2")
    g(f"ds_write_b128 v4, {vr(A,4)} offset:{0*CV_COPY+32}")
    g(f"ds_write_b128 v4, {vr(T,4)} offset:{1*CV_COPY+32}")
    g(f"ds_write_b128 v4, {vr(B,4)} offset:{2*CV_COPY+32}")
    g(f"ds_write_b128 v4, {vr(T+4,4)} offset:{3*CV_COPY+32}")
    g(f"ds_write_b128 v4, {vr(X,4)} offset:{CV_X}")
    g("v_cmp_eq_u32 vcc, 0, v0")
    g("s_and_saveexec_b64 s[32:33], vcc")
    g(f"v_lshlrev_b32 v34, 16, v{A}")
    g(f"v_alignbyte_b32 v35, v{A+1}, v{A}, 2")
    for sg in range(4):
        g(f"ds_write_b128 v4, v[44:47] offset:{sg*CV_COPY}")
    g(f"ds_write_b128 v4, v[44:47] offset:{0*CV_COPY+16}")
    g("v_mov_b32 v36, 0")
    g("v_mov_b32 v37, 0")
    g("v_mov_b32 v38, 0")
    g("v_mov_b32 v39, v34")
    g(f"ds_write_b128 v4, v[36:39] offset:{1*CV_COPY+16}")
    g("v_mov_b32 v40, 0")
    g("v_mov_b32 v41, 0")
    g("v_mov_b32 v42, 0")
    g(f"v_mov_b32 v43, v{A}")
    g(f"ds_write_b128 v4, v[40:43] offset:{2*CV_COPY+16}")
    g("v_mov_b32 v48, 0")
    g("v_mov_b32 v49, 0")
    g("v_mov_b32 v50, v34")
    g("v_mov_b32 v51, v35")
    g(f"ds_write_b128 v4, v[48:51] offset:{3*CV_COPY+16}")
    g("s_mov_b64 exec, s[32:33]")
    g("s_waitcnt lgkmcnt(0)")
    g("s_barrier")
    stamp(g, 3)
    ACC = 16
    FR = 48

    def rdA(rp, mu):
        g(f"ds_read_b64 {vr(FR+4*mu,2)}, v3 offset:{64*(8*mu+rp)}")
        g(f"ds_read_b64 {vr(FR+4*mu+2,2)}, v3 offset:{64*(8*mu+rp)+8}")

    def rdB(rp, tau):
        g(f"ds_read_b128 {vr(FR+32+4*tau,4)}, v5 offset:{64*(56-8*tau+rp)}")

    def mf(mu, tau, first=False):
        t = mu + tau
        acc = vr(ACC + 4 * t, 4)
        c = "0" if first else acc
        g(f"v_mfma_f32_16x16x32_bf16 {acc}, {vr(FR+4*mu,4)}, {vr(FR+32+4*tau,4)}, {c}")

    g("v_lshlrev_b32 v14, 5, v6")
    g("v_lshl_add_u32 v14, v7, 3, v14")
    g(f"v_sub_u32 v15, {CV_X+4088-512}, v14")
    g("s_lshl_b32 s36, s12, 10")
    g("v_subrev_u32 v15, s36, v15")
    KV = 112
    g(f"ds_read_b64 {vr(KV,2)}, v15 offset:512")
    g(f"ds_read_b64 {vr(KV+2,2)}, v15 offset:0")
    rdA(0, 0)
    for tau in range(8):
        rdB(0, tau)
    for mu in range(1, 8):
        rdA(0, mu)
    for mu in range(8):
        n = 2 * (7 - mu) + 3 * mu
        g(f"s_waitcnt lgkmcnt({min(n,15)})")
        for tau in range(8 - mu):
            mf(mu, tau, first=(mu == 0))
        rdA(1, mu)
        rdB(1, 7 - mu)
    for k in range(8):
        g(f"s_waitcnt lgkmcnt({min(3*(7-k),15)})")
        for mu in range(k + 1):
            mf(mu, 7 - k)
    g("s_barrier")
    stamp(g, 4)
    g("v_lshlrev_b32 v11, 4, v2")
    ljoin = g.newlabel("cvj")
    lw = [g.newlabel("cvw") for _ in range(4)]
    for w in range(1, 4):
        g(f"s_cmp_eq_u32 s12, {w}")
        g(f"s_cbranch_scc1 {lw[w]}")
    for w in range(4):
        g.label(lw[w])
        g.nop(4)
        for o in range(4):
            if o == w:
                continue
            j = w if w < o else w - 1
            for u in range(2):
                g(f"ds_write_b128 v11, {vr(ACC+4*(2*o+u),4)} offset:{((o*3+j)*2+u)*1024}")
        if w:
            for i in range(8):
                g(f"v_mov_b32 v{ACC+i}, v{ACC+8*w+i}")
        if w < 3:
            g(f"s_branch {ljoin}")
    g.label(ljoin)
    g("s_mul_i32 s36, s12, 6144")
    g("v_add_u32 v11, s36, v11")
    g("s_waitcnt lgkmcnt(0)")
    g("s_barrier")
    P = 48
    for j in range(6):
        g(f"ds_read_b128 {vr(P+4*j,4)}, v11 offset:{1024*j}")
    g("s_and_b32 s18, s3, 1")
    g("s_lshl_b32 s18, s18, 4")
    g("s_lshr_b32 s19, s19, s18")
    g("s_lshl_b32 s19, s19, 16")
    g("s_mov_b32 s37, 0xffff0000")
    g("s_lshl_b32 s36, s12, 10")
    g("s_add_u32 s36, s36, s16")
    U = 72
    for u in range(2):
        g(f"v_and_b32 v{U+4*u+0}, s37, v{KV+2*u+1}")
        g(f"v_lshlrev_b32 v{U+4*u+1}, 16, v{KV+2*u+1}")
        g(f"v_and_b32 v{U+4*u+2}, s37, v{KV+2*u}")
        g(f"v_lshlrev_b32 v{U+4*u+3}, 16, v{KV+2*u}")
        for r in range(4):
            g(f"v_mul_f32 v{U+4*u+r}, s19, v{U+4*u+r}")
        for r in range(4):
            g(f"v_cvt_pk_bf16_f32 v{U+4*u+r}, 0, v{U+4*u+r}")
    g("s_waitcnt lgkmcnt(0)")
    for u in range(2):
        a = ACC + 4 * u
        for j in range(3):
            for r in range(4):
                g(f"v_add_f32 v{a+r}, v{a+r}, v{P+4*(2*j+u)+r}")
        for r in range(4):
            g(f"v_cvt_pk_bf16_f32 v{a+r}, 0, v{a+r}")
        for r in range(4):
            g(f"v_add_f32 v{a+r}, v{a+r}, v{U+4*u+r}")
        g(f"v_cvt_pk_bf16_f32 v{a}, v{a}, v{a+1}")
        g(f"v_cvt_pk_bf16_f32 v{a+1}, v{a+2}, v{a+3}")
        g(f"buffer_store_dwordx2 {vr(a,2)}, v14, s[28:31], s36 offen offset:{512*u} {STF}")
    stamp(g, 5)
    if STAMPS: g("s_waitcnt vmcnt(0)")
    stamp_flush(g, 1, 6, 8)
    g("s_endpgm")


AT_K = 0
AT_V = 15360
AT_VG = 1008
AT_LDS = AT_V + 24 * AT_VG
NEG = 0xFF800000


def gen_attn(g):
    stamp(g, 0)
    g(f"s_load_dwordx2 s[8:9], s[0:1], {KA['ws']}")
    g("v_lshrrev_b32 v1, 6, v0")
    g("v_and_b32 v2, 63, v0")
    g("s_nop 0")
    g("v_readfirstlane_b32 s12, v1")
    g("s_lshl_b32 s13, s11, 7")
    g("s_sub_u32 s14, s13, 256")
    g("s_waitcnt lgkmcnt(0)")
    stamp(g, 1)
    make_srd(g, 20, 8, WS_QK4, SZ_QK4)
    make_srd(g, 24, 8, WS_VG, SZ_26)
    make_srd(g, 28, 8, WS_O4, SZ_26)
    g("s_mul_i32 s15, s10, 5")
    g("s_add_u32 s16, s15, 160")
    g("s_lshl_b32 s16, s16, 14")
    g("s_lshl_b32 s17, s14, 3")
    g("s_add_u32 s16, s16, s17")
    g("v_lshlrev_b32 v3, 4, v0")
    QF = 16
    KF = 24
    VF = 40
    M = 52
    O = 56
    S = 72
    MK = 120
    ST = 72
    lskip = g.newlabel("atk")
    g("s_cmp_eq_u32 s12, 3")
    g(f"s_cbranch_scc1 {lskip}")
    for j in range(5):
        g(f"s_add_u32 s17, s16, {16384*j}")
        g(f"buffer_load_dwordx4 {vr(ST+4*j,4)}, v3, s[20:23], s17 offen")
    g.label(lskip)
    g("v_mul_u32_u24 v4, 0x667, v0")
    g("v_lshrrev_b32 v4, 16, v4")
    g("v_mul_u32_u24 v5, 40, v4")
    g("v_sub_u32 v5, v0, v5")
    g("s_ashr_i32 s17, s14, 4")
    g("v_add_u32 v6, s17, v4")
    g("s_movk_i32 s18, 20480")
    g("v_mul_lo_u32 v6, v6, s18")
    g("s_mul_i32 s18, s10, 640")
    g("v_lshl_add_u32 v6, v5, 4, v6")
    g("v_add_u32 v6, s18, v6")
    g(f"v_mul_u32_u24 v7, {AT_VG}, v4")
    g("v_lshrrev_b32 v8, 1, v5")
    g("v_mul_u32_u24 v8, 48, v8")
    g("v_add_u32 v7, v7, v8")
    g("v_and_b32 v8, 1, v5")
    g("v_lshl_add_u32 v7, v8, 4, v7")
    g("v_cmp_gt_u32 vcc, 240, v0")
    g("s_and_saveexec_b64 s[32:33], vcc")
    for it in range(4):
        if it:
            g(f"v_add_u32 v6, {6*20480}, v6")
        g(f"buffer_load_dwordx4 {vr(ST+20+4*it,4)}, v6, s[24:27], 0 offen")
    g("s_mov_b64 exec, s[32:33]")
    g("v_and_b32 v8, 31, v2")
    g("v_lshrrev_b32 v9, 5, v2")
    g("s_lshl_b32 s17, s12, 5")
    g("s_add_u32 s38, s17, s13")
    g("v_add_u32 v10, s38, v8")
    g("v_lshlrev_b32 v10, 3, v10")
    g("v_lshl_add_u32 v11, v9, 15, v10")
    g("s_lshl_b32 s18, s15, 14")
    g(f"buffer_load_dwordx2 {vr(QF,2)}, v11, s[20:23], s18 offen")
    g("s_add_u32 s19, s18, 16384")
    g(f"buffer_load_dwordx2 {vr(QF+2,2)}, v11, s[20:23], s19 offen")
    g("s_add_u32 s19, s18, 65536")
    g(f"buffer_load_dwordx2 {vr(QF+4,2)}, v10, s[20:23], s19 offen")
    g("v_lshrrev_b32 v12, 1, v0")
    g(f"v_mul_u32_u24 v12, {AT_VG}, v12")
    g("v_and_b32 v13, 1, v0")
    g("v_lshl_add_u32 v12, v13, 4, v12")
    for i in range(4):
        g(f"v_mov_b32 v{O+i}, 0x3f803f80")
    g("v_cmp_gt_u32 vcc, 48, v0")
    g("s_and_saveexec_b64 s[32:33], vcc")
    g(f"ds_write_b128 v12, {vr(O,4)} offset:{AT_V+960}")
    g("s_mov_b64 exec, s[32:33]")
    g("v_lshlrev_b32 v13, 2, v9")
    g("v_sub_u32 v13, v8, v13")
    for r in range(16):
        c = 8 * (r >> 2) + (r & 3)
        g(f"v_cmp_gt_i32 s[{40+2*r}:{41+2*r}], {c}, v13")
    g("s_lshl_b32 s17, s12, 8")
    g("v_lshl_add_u32 v14, v8, 3, s17")
    g("v_mul_u32_u24 v15, 6144, v9")
    g("v_add_u32 v15, v15, v14")
    g("v_min_u32 v12, 20, v8")
    g("v_cmp_lt_u32 vcc, 27, v8")
    g("v_mov_b32 v13, 4")
    g("s_nop 1")
    g("v_cndmask_b32 v12, v12, v13, vcc")
    g("v_mul_u32_u24 v12, 48, v12")
    g("v_lshl_add_u32 v12, v9, 4, v12")
    g(f"s_mul_i32 s17, s12, {2*AT_VG}")
    g(f"s_add_u32 s17, s17, {AT_V}")
    g("v_add_u32 v12, s17, v12")
    g(f"v_mov_b32 v13, {NEG:#x}")
    for b in range(2):
        g(f"v_mov_b32 v{KF+8*b+6}, 0")
        g(f"v_mov_b32 v{KF+8*b+7}, 0")
    g(f"v_mov_b32 v{QF+6}, 0")
    g(f"v_mov_b32 v{QF+7}, 0")
    g("v_cmp_eq_u32 s[34:35], 1, v9")
    import struct
    c = (20 ** -0.5) * 1.4426950408889634
    cb = struct.unpack("<I", struct.pack("<f", c))[0]
    g(f"s_mov_b32 s36, {cb:#x}")
    g(f"s_mov_b32 s37, {cb:#x}")
    g(f"s_mov_b32 s39, {cb | 0x80000000:#x}")
    g(f"v_mov_b32 v{M}, 0xffff")
    g(f"v_mov_b32 v{M+1}, 0xffff0000")
    for j in range(8):
        g(f"v_cndmask_b32 v{MK+j}, 0, v{M}, s[{40+4*j}:{41+4*j}]")
        g(f"v_cndmask_b32 v{M+2}, 0, v{M+1}, s[{42+4*j}:{43+4*j}]")
        g(f"v_or_b32 v{MK+j}, v{MK+j}, v{M+2}")
    g("s_waitcnt vmcnt(3)")
    stamp(g, 2)
    lskip = g.newlabel("atk")
    g("s_cmp_eq_u32 s12, 3")
    g(f"s_cbranch_scc1 {lskip}")
    for j in range(5):
        g(f"ds_write_b128 v3, {vr(ST+4*j,4)} offset:{AT_K+3072*j}")
    g.label(lskip)
    g("v_cmp_gt_u32 vcc, 240, v0")
    g("s_and_saveexec_b64 s[32:33], vcc")
    for it in range(4):
        g(f"ds_write_b128 v7, {vr(ST+20+4*it,4)} offset:{AT_V+6*AT_VG*it}")
    g("s_mov_b64 exec, s[32:33]")
    g("s_waitcnt vmcnt(0)")
    g(f"v_cndmask_b32 v{QF+4}, v{QF+4}, 0, s[34:35]")
    g(f"v_cndmask_b32 v{QF+5}, v{QF+5}, 0, s[34:35]")
    g("s_waitcnt lgkmcnt(0)")
    g("s_barrier")
    stamp(g, 3)

    def kreads(tau, b):
        g(f"ds_read_b64 {vr(KF+8*b,2)}, v15 offset:{256*tau}")
        g(f"ds_read_b64 {vr(KF+8*b+2,2)}, v15 offset:{256*tau+3072}")
        g(f"ds_read_b64 {vr(KF+8*b+4,2)}, v14 offset:{256*tau+4*3072}")

    chunks = [[0, 8, 1], [2, 3, 4], [5, 6, 7]]
    korder = [t for c in chunks for t in c]
    vorder = []
    for c in chunks:
        for t in c:
            vorder += [2 * t, 2 * t + 1]

    def vread(i):
        g(f"ds_read_b128 {vr(VF+4*(i%3),4)}, v12 offset:{AT_VG*vorder[i]}")

    kreads(korder[0], 0)
    for ch in range(3):
        for tl in range(3):
            ki = 3 * ch + tl
            b = ki % 2
            if tl < 2:
                kreads(korder[ki + 1], 1 - b)
                g("s_waitcnt lgkmcnt(3)")
            else:
                vread(6 * ch)
                vread(6 * ch + 1)
                g("s_waitcnt lgkmcnt(2)")
            sreg = vr(S + 16 * tl, 16)
            g(f"v_mfma_f32_32x32x16_bf16 {sreg}, {vr(KF+8*b,4)}, {vr(QF,4)}, 0")
            g(f"v_mfma_f32_32x32x16_bf16 {sreg}, {vr(KF+8*b+4,4)}, {vr(QF+4,4)}, {sreg}")
        g.nop(12)
        lok = g.newlabel("atok")
        for tl in range(3):
            tau = chunks[ch][tl]
            if tau == 8:
                continue
            g(f"s_cmp_ge_u32 s38, {256-32*tau}")
            g(f"s_cbranch_scc1 {lok}")
            for r in range(16):
                g(f"v_mov_b32 v{S+16*tl+r}, v13")
        g.label(lok)
        if ch == 0:
            for r in range(16):
                g(f"v_cndmask_b32 v{S+16+r}, v{S+16+r}, v{S+r}, s[{40+2*r}:{41+2*r}]")
            lo, n = S + 16, 32
        else:
            lo, n = S, 48
        g(f"v_max3_f32 v{M+2}, v{lo}, v{lo+1}, v{lo+2}")
        g(f"v_max3_f32 v{M+3}, v{lo+3}, v{lo+4}, v{lo+5}")
        i = 6
        k = 0
        while i < n:
            g(f"v_max3_f32 v{M+2+k}, v{M+2+k}, v{lo+i}, v{lo+i+1}")
            k ^= 1
            i += 2
        g(f"v_max_f32 v{M+2}, v{M+2}, v{M+3}")
        g(f"v_mov_b32 v{M+3}, v{M+2}")
        g("s_nop 1")
        g(f"v_permlane32_swap_b32 v{M+2}, v{M+3}")
        g("s_nop 1")
        g(f"v_max_f32 v{M+2}, v{M+2}, v{M+3}")
        if ch == 0:
            g(f"v_mul_f32 v{M}, s39, v{M+2}")
            g(f"v_min_f32 v{M}, 0x7f7fffff, v{M}")
            g(f"v_mov_b32 v{M+1}, v{M}")
        else:
            g(f"v_mul_f32 v{M+2}, s39, v{M+2}")
            g(f"v_min_f32 v{M+2}, v{M+2}, v{M}")
            g(f"v_sub_f32 v{M+3}, v{M+2}, v{M}")
            g(f"v_exp_f32 v{M+3}, v{M+3}")
            g(f"v_mov_b32 v{M}, v{M+2}")
            g(f"v_mov_b32 v{M+1}, v{M+2}")
            for r in range(16):
                g(f"v_mul_f32 v{O+r}, v{O+r}, v{M+3}")
        if ch < 2:
            kreads(korder[3 * ch + 3], (3 * ch + 3) % 2)
        li = 0
        for tl in range(3):
            if ch == 0 and tl == 0:
                continue
            sb = S + 16 * tl
            for r in range(0, 16, 2):
                g(f"v_pk_fma_f32 {vr(sb+r,2)}, {vr(sb+r,2)}, s[36:37], {vr(M,2)}")
            for r in range(16):
                g(f"v_exp_f32 v{sb+r}, v{sb+r}")
            g("s_nop 0")
            for j in range(8):
                g(f"v_cvt_pk_bf16_f32 v{sb+j}, v{sb+2*j}, v{sb+2*j+1}")
            srcs = [sb]
            if ch == 0 and tl == 1:
                for j in range(8):
                    g(f"v_and_b32 v{S+j}, v{MK+j}, v{sb+j}")
                for j in range(8):
                    g(f"v_xor_b32 v{sb+j}, v{S+j}, v{sb+j}")
                srcs = [S, sb]
            for sp in srcs:
                for kp in range(2):
                    idx = 6 * ch + li
                    if li + 2 < 6:
                        vread(idx + 2)
                    extra = 3 if (ch < 2 and li < 2) else 0
                    nn = min(2, 5 - li) + extra
                    g(f"s_waitcnt lgkmcnt({nn})")
                    cc = "0" if idx == 0 else vr(O, 16)
                    if kp == 0:
                        g("s_nop 0")
                    g(f"v_mfma_f32_32x32x16_bf16 {vr(O,16)}, {vr(VF+4*(idx%3),4)}, {vr(sp+4*kp,4)}, {cc}")
                    li += 1
    g.nop(14)
    stamp(g, 5)
    g(f"v_cndmask_b32 v{M}, v{O+12}, v{O+8}, s[34:35]")
    g(f"v_rcp_f32 v{M}, v{M}")
    g("v_lshl_add_u32 v11, v9, 14, v10")
    for r in range(12):
        g(f"v_mul_f32 v{O+r}, v{O+r}, v{M}")
    for a in range(3):
        g(f"v_cvt_pk_bf16_f32 v{S+2*a}, v{O+4*a}, v{O+4*a+1}")
        g(f"v_cvt_pk_bf16_f32 v{S+2*a+1}, v{O+4*a+2}, v{O+4*a+3}")
    for a in range(3):
        g(f"s_add_u32 s19, s18, {2*a*16384}")
        if a == 2:
            g("s_andn2_b64 exec, exec, s[34:35]")
        g(f"buffer_store_dwordx2 {vr(S+2*a,2)}, v11, s[28:31], s19 offen {STF}")
    if STAMPS: g("s_waitcnt vmcnt(0)")
    stamp_flush(g, 1, 6, 8)
    dbg_end(g, 1)
    g("s_endpgm")


def gen_k2(g):
    name = "k2_kernel"
    kernel_begin(g, name)
    lat = g.newlabel("attn")
    lend = g.newlabel("end")
    g("s_cmp_ge_u32 s2, 1152")
    g(f"s_cbranch_scc1 {lend}")
    g("s_cmp_lt_u32 s2, 512")
    g(f"s_cbranch_scc1 {lat}")
    g("s_sub_u32 s3, s2, 512")
    gen_conv(g)
    g.label(lat)
    g("s_and_b32 s4, s2, 7")
    g("s_lshr_b32 s5, s2, 3")
    g("s_lshr_b32 s10, s5, 4")
    g("s_lshl_b32 s10, s10, 3")
    g("s_add_u32 s10, s10, s4")
    g("s_and_b32 s11, s5, 15")
    gen_attn(g)
    g.label(lend)
    g("s_endpgm")
    return name


G2_NS = 5
G2_STAGE = 12288


def gen_gemm2(g):
    NS = G2_NS
    NIT = 20
    stamp(g, 0)
    g(f"s_load_dwordx4 s[4:7], s[0:1], {KA['wo']}")
    g(f"s_load_dwordx2 s[8:9], s[0:1], {KA['ws']}")
    g("s_and_b32 s10, s2, 7")
    g("s_lshr_b32 s11, s2, 3")
    g("s_and_b32 s12, s11, 1")
    g("s_lshl_b32 s10, s10, 1")
    g("s_add_u32 s10, s10, s12")
    g("s_lshr_b32 s11, s11, 1")
    g("v_lshrrev_b32 v1, 6, v0")
    g("v_and_b32 v2, 63, v0")
    g("s_nop 0")
    g("v_readfirstlane_b32 s12, v1")
    g("v_lshlrev_b32 v3, 4, v2")
    g("s_lshl_b32 s14, s12, 15")
    g("v_add_u32 v3, s14, v3")
    g("v_lshrrev_b32 v4, 3, v2")
    g("s_movk_i32 s13, 1280")
    g("v_mul_lo_u32 v7, v4, s13")
    g("v_bfe_u32 v5, v2, 2, 1")
    g("v_bfe_u32 v6, v2, 4, 1")
    g("v_xor_b32 v5, v5, v6")
    g("v_lshl_add_u32 v7, v5, 6, v7")
    g("v_and_b32 v5, 3, v2")
    g("v_lshl_add_u32 v7, v5, 4, v7")
    g("s_mul_i32 s14, s12, 10240")
    g("v_add_u32 v7, s14, v7")
    g("s_lshr_b32 s15, s12, 1")
    g("s_and_b32 s16, s12, 1")
    g("v_and_b32 v8, 31, v2")
    g("v_lshrrev_b32 v9, 5, v2")
    g("s_lshl_b32 s17, s15, 9")
    g("v_lshl_add_u32 v11, v8, 3, s17")
    g("v_lshl_add_u32 v11, v9, 11, v11")
    g("v_bfe_u32 v13, v2, 2, 2")
    g("v_lshl_add_u32 v14, v9, 3, v13")
    g("v_lshlrev_b32 v14, 7, v14")
    g("v_bfe_u32 v15, v2, 4, 1")
    g("v_lshl_add_u32 v14, v15, 5, v14")
    g("v_lshl_add_u32 v14, v5, 3, v14")
    g("v_add_u32 v14, 8192, v14")
    g("v_lshrrev_b32 v15, 1, v13")
    g("v_xor_b32 v15, s16, v15")
    g("v_lshl_add_u32 v15, v15, 6, v14")
    g("s_waitcnt lgkmcnt(0)")
    stamp(g, 1)
    make_srd(g, 20, 8, WS_O4, SZ_26)
    make_srd(g, 24, 4, 0, 640 * 1280)
    g("s_lshl_b32 s28, s10, 10")
    g("s_add_u32 s29, s28, 16384")
    g("s_lshl_b32 s30, s11, 7")
    g("s_lshl_b32 s32, s12, 11")
    g("s_lshl_b32 s33, s12, 10")
    g("s_lshl_b32 s34, s11, 1")
    g("s_mul_i32 s35, s10, 7")
    g("s_add_u32 s34, s34, s35")
    g("s_mul_hi_u32 s35, s34, 0xccccccd")
    g("s_mul_i32 s35, s35, 20")
    g("s_sub_u32 s34, s34, s35")
    g("s_lshl_b32 s35, s34, 17")
    g("s_add_u32 s28, s28, s35")
    g("s_add_u32 s29, s29, s35")
    g("s_mul_i32 s35, s34, 40960")
    g("s_add_u32 s30, s30, s35")
    g(f"s_mov_b32 s37, {8*16384}")
    g(f"s_mov_b32 s31, {32*1280}")

    def dma_piece(it, j):
        base = (it % NS) * G2_STAGE
        sm, off, vo, srd, so, inc = [(32, 0, 3, 20, 28, 35), (32, 1024, 3, 20, 29, 35), (33, 8192, 7, 24, 30, 36)][j]
        if j == 0:
            g("s_add_u32 s34, s34, 1")
            g("s_cmp_eq_u32 s34, 20")
            g(f"s_cselect_b32 s35, {(8*16384-160*16384) & 0xffffffff:#x}, s37")
            g(f"s_cselect_b32 s36, {(32*1280-640*1280) & 0xffffffff:#x}, s31")
            g("s_cselect_b32 s34, 0, s34")
        g(f"s_add_u32 m0, s{sm}, {base+off}")
        g("s_nop 0")
        g(f"buffer_load_dwordx4 v{vo}, s[{srd}:{srd+3}], s{so} offen lds")
        g(f"s_add_u32 s{so}, s{so}, s{inc}")

    def issue_dma(it):
        for j in range(3):
            dma_piece(it, j)

    for it in range(NS - 1):
        issue_dma(it)
    ACC = 32
    FR = 64

    def read_list(it, ks, b):
        base = (it % NS) * G2_STAGE
        L = []
        for half in range(2):
            L.append(f"ds_read_b64_tr_b16 {vr(FR+12*b+8+2*half,2)}, v15 offset:{base+2048*ks+512*half}")
        for mt in range(2):
            for a in range(2):
                L.append(f"ds_read_b64 {vr(FR+12*b+4*mt+2*a,2)}, v11 offset:{base+4096*ks+1024*a+256*mt}")
        return L

    def mfmas(b, first, after=((), ())):
        for mt in range(2):
            acc = vr(ACC + 16 * mt, 16)
            c = "0" if first else acc
            g(f"v_mfma_f32_32x32x16_bf16 {acc}, {vr(FR+12*b+8,4)}, {vr(FR+12*b+4*mt,4)}, {c}")
            for x in after[mt]:
                if callable(x):
                    x()
                else:
                    g(x)

    for it in range(NIT):
        n = 3 * (min(it + NS - 2, NIT - 1) - it)
        g(f"s_waitcnt vmcnt({n}) lgkmcnt(0)")
        g("s_barrier")
        if it in (0, 5, 10, 15):
            stamp(g, 2 + it // 5)
        pf = it + NS - 1 < NIT
        nx = it + NS - 1
        d = [(lambda j=j: dma_piece(nx, j)) for j in range(3)] if pf else [(lambda: None)] * 3
        r0 = read_list(it, 0, 0)
        r1 = read_list(it, 1, 1)
        if it > 0:
            mfmas(1, False, (r0[:3], r0[3:] + [d[0]]))
        else:
            for x in r0:
                g(x)
            d[0]()
        g("s_waitcnt lgkmcnt(0)")
        mfmas(0, it == 0, (r1[:3] + [d[1]], r1[3:] + [d[2]]))
    g("s_waitcnt lgkmcnt(0)")
    mfmas(1, False)
    g("s_barrier")
    stamp(g, 6)
    g("s_mul_i32 s17, s15, 9216")
    g("s_lshl_b32 s18, s16, 6")
    g("s_add_u32 s17, s17, s18")
    g("v_mul_u32_u24 v16, 144, v8")
    g("v_lshl_add_u32 v16, v9, 3, v16")
    g("v_add_u32 v16, s17, v16")
    g.nop(10)
    k = 0
    for mt in range(2):
        for a in range(4):
            acc = ACC + 16 * mt + 4 * a
            t = FR + 2 * (k % 8)
            k += 1
            g(f"v_cvt_pk_bf16_f32 v{t}, v{acc}, v{acc+1}")
            g(f"v_cvt_pk_bf16_f32 v{t+1}, v{acc+2}, v{acc+3}")
            g(f"ds_write_b64 v16, {vr(t,2)} offset:{4608*mt+16*a}")
    make_srd(g, 36, 6, 0, 2 * SZ_26)
    g("v_lshrrev_b32 v17, 3, v0")
    g("v_and_b32 v18, 7, v0")
    g("v_mul_u32_u24 v19, 144, v17")
    g("v_lshl_add_u32 v19, v18, 4, v19")
    g("s_movk_i32 s13, 2560")
    g("v_mul_lo_u32 v20, v17, s13")
    g("v_lshl_add_u32 v20, v18, 4, v20")
    g("s_mul_i32 s40, s10, 327680")
    g("s_lshl_b32 s41, s11, 7")
    g("s_add_u32 s40, s40, s41")
    g("s_add_u32 s40, s40, 1280")
    g("s_waitcnt lgkmcnt(0)")
    g("s_barrier")
    for it in range(4):
        g(f"ds_read_b128 {vr(ACC+4*it,4)}, v19 offset:{4608*it}")
    for it in range(4):
        g(f"s_waitcnt lgkmcnt({3-it})")
        g(f"buffer_store_dwordx4 {vr(ACC+4*it,4)}, v20, s[36:39], s40 offen {NTO}")
        g(f"s_add_u32 s40, s40, {32*2560}")
    stamp(g, 7)
    if STAMPS: g("s_waitcnt vmcnt(0)")
    stamp_flush(g, 2, 8, 8)
    dbg_end(g, 2)
    g("s_endpgm")


def gen_k3(g):
    name = "k3_kernel"
    kernel_begin(g, name)
    la3 = g.newlabel("a3")
    lend = g.newlabel("end")
    g("s_cmp_ge_u32 s2, 160")
    g(f"s_cbranch_scc1 {la3}")
    gen_gemm2(g)
    g.label(la3)
    g("s_cmp_ge_u32 s2, 240")
    g(f"s_cbranch_scc1 {lend}")
    g("v_lshrrev_b32 v1, 6, v0")
    g("s_sub_u32 s3, s2, 160")
    g("s_lshl_b32 s3, s3, 2")
    g("v_readfirstlane_b32 s19, v1")
    g("s_nop 3")
    g("s_add_u32 s3, s3, s19")
    gen_a3(g, "s3")
    g.label(lend)
    g("s_endpgm")
    return name


def main(path):
    g = G()
    k2_lds = AT_LDS
    g.raw(f"; @launch kernel=k1_kernel grid=({N_G1_WG+N_AUX_WG},1,1) block=(256,1,1) lds={G1_NS*G1_STAGE}")
    g.raw(f"; @launch kernel=k2_kernel grid=({N_CONV_WG+512},1,1) block=(256,1,1) lds={k2_lds}")
    g.raw(f"; @launch kernel=k3_kernel grid=(240,1,1) block=(256,1,1) lds={G2_NS*G2_STAGE}")
    g.raw('.amdgcn_target "amdgcn-amd-amdhsa--gfx950"')
    g.raw(".text")
    gen_k1(g)
    gen_k2(g)
    gen_k3(g)
    g.raw('.section .rodata,"a"')
    g.raw(".p2align 6")
    kernel_desc(g, "k1_kernel", 256)
    g.raw(".p2align 6")
    kernel_desc(g, "k2_kernel", 128)
    g.raw(".p2align 6")
    kernel_desc(g, "k3_kernel", 128)
    open(path, "w").write("\n".join(g.lines) + "\n")


if __name__ == "__main__":
    if "--stamps" in sys.argv:
        STAMPS = True
        sys.argv.remove("--stamps")
    for a in list(sys.argv[1:]):
        if "=" in a:
            k_, v_ = a.split("=")
            globals()[k_] = eval(v_)
            sys.argv.remove(a)
    main(sys.argv[1] if len(sys.argv) > 1 else f"cdna_kernels/{NAME}.s")
```

```python
import sys

NAME = "concat_heads__ssm_conv_h3__sliding_block__prompt"

WS_XR = 0x000000
WS_QK4 = 0x280000
WS_VG = 0x780000
WS_O4 = 0xA00000
WS_Y2T = 0xC80000
SZ_26 = 2621440
SZ_QK4 = 5242880

KA = dict(q=0, k=8, v=16, shift=24, ssmk=32, ssmD=40, x=48, wqkv=56, wo=64, out=72, dbg=80, ws=88)


class G:
    def __init__(self):
        self.lines = []
        self.uid = 0

    def __call__(self, s):
        self.lines.append("    " + s)

    def label(self, name):
        self.lines.append(name + ":")

    def raw(self, s):
        self.lines.append(s)

    def newlabel(self, p="L"):
        self.uid += 1
        return f".{p}_{self.uid}"

    def nop(self, n):
        while n > 0:
            k = min(n, 16)
            self(f"s_nop {k-1}")
            n -= k


def vr(a, n=1):
    return f"v{a}" if n == 1 else f"v[{a}:{a+n-1}]"


def sr(a, n=1):
    return f"s{a}" if n == 1 else f"s[{a}:{a+n-1}]"


def make_srd(g, d, ptr, off, size):
    if off:
        g(f"s_add_u32 s{d}, s{ptr}, {off:#x}")
        g(f"s_addc_u32 s{d+1}, s{ptr+1}, 0")
    else:
        g(f"s_mov_b32 s{d}, s{ptr}")
        g(f"s_mov_b32 s{d+1}, s{ptr+1}")
    g(f"s_mov_b32 s{d+2}, {size:#x}")
    g(f"s_mov_b32 s{d+3}, 0x00020000")


STAMPS = False
STF = 'sc1'
NTI = ''
NTW = ''
NTO = 'sc1'
NTM = ''
NTH = ''
WS_ST = 0x1000000


def stamp(g, idx):
    if not STAMPS:
        return
    g("s_memrealtime s[98:99]")
    g("s_waitcnt lgkmcnt(0)")
    g(f"s_mov_b32 s{80+idx}, s98")


def stamp_flush(g, kidx, n, wsptr):
    if not STAMPS:
        return
    stamp(g, n)
    n += 1
    g("s_mov_b64 exec, -1")
    g(f"s_add_u32 s96, s{wsptr}, {WS_ST + kidx*0x40000:#x}")
    g(f"s_addc_u32 s97, s{wsptr+1}, 0")
    g("s_mov_b32 s98, 0x40000")
    g("s_mov_b32 s99, 0x00020000")
    g("v_cmp_eq_u32 vcc, 0, v0")
    g("s_and_saveexec_b64 s[94:95], vcc")
    g("s_lshl_b32 s94, s2, 6")
    g("v_mov_b32 v1, s94")
    for i in range(n):
        g(f"v_mov_b32 v2, s{80+i}")
        g(f"buffer_store_dword v2, v1, s[96:99], 0 offen offset:{4*i}")


DBGT = False


def kernel_begin(g, name):
    g.raw(f".globl {name}")
    g.raw(".p2align 8")
    g.raw(f".type {name},@function")
    g.label(name)
    if DBGT:
        g("s_memrealtime s[72:73]")
        g("s_memtime s[74:75]")


def dbg_end(g, kidx):
    if not DBGT:
        return
    l = g.newlabel("dbg")
    g("s_cmp_lg_u32 s2, 0")
    g(f"s_cbranch_scc1 {l}")
    g("s_waitcnt vmcnt(0)")
    g("s_memrealtime s[76:77]")
    g("s_memtime s[78:79]")
    g(f"s_load_dwordx2 s[84:85], s[0:1], {KA['dbg']}")
    g("s_waitcnt lgkmcnt(0)")
    g("s_mov_b32 s86, 256")
    g("s_mov_b32 s87, 0x00020000")
    g("s_mov_b64 exec, 1")
    g("v_mov_b32 v1, 0")
    for i, v in enumerate([str(100 + kidx), "s72", "s76", "s74", "s78"]):
        g(f"v_mov_b32 v2, {v}")
        g(f"buffer_store_dword v2, v1, s[84:87], 0 offen offset:{4*i}")
    g.label(l)


def kernel_desc(g, name, vgpr, sgpr=102):
    acc = (vgpr + 3) // 4 * 4
    g.raw(f".amdhsa_kernel {name}")
    g.raw(f"  .amdhsa_next_free_vgpr {vgpr}")
    g.raw(f"  .amdhsa_next_free_sgpr {sgpr}")
    g.raw(f"  .amdhsa_accum_offset {acc}")
    g.raw("  .amdhsa_group_segment_fixed_size 0")
    g.raw("  .amdhsa_kernarg_size 96")
    g.raw("  .amdhsa_user_sgpr_count 2")
    g.raw("  .amdhsa_user_sgpr_kernarg_segment_ptr 1")
    g.raw("  .amdhsa_system_sgpr_workgroup_id_x 1")
    g.raw("  .amdhsa_float_denorm_mode_32 3")
    g.raw(".end_amdhsa_kernel")


A1_RL = 4
N_A1_WG = 2048 // (8 * A1_RL) * 10 // 4


def gen_a1_multi(g, s_wv, nwv):
    RL = A1_RL
    NR = RL + 3
    NU = (640 + nwv - 1) // nwv
    g(f"s_load_dwordx4 s[4:7], s[0:1], {KA['k']}")
    g(f"s_load_dwordx2 s[8:9], s[0:1], {KA['shift']}")
    g(f"s_load_dwordx2 s[10:11], s[0:1], {KA['ws']}")
    g("v_and_b32 v1, 63, v0")
    g("v_and_b32 v2, 7, v1")
    g("v_lshrrev_b32 v3, 3, v1")
    g(f"v_mul_u32_u24 v3, {RL}, v3")
    g("v_mov_b32 v9, 0x80000000")
    g("s_waitcnt lgkmcnt(0)")
    make_srd(g, 20, 4, 0, SZ_26)
    make_srd(g, 24, 6, 0, SZ_26)
    make_srd(g, 28, 8, 0, 5120)
    make_srd(g, 32, 10, WS_XR, SZ_26)
    RAW = 64
    PER = 4 * NR + 4 * RL + 16
    for u in range(NU):
        g(f"s_add_u32 s12, {s_wv}, {u*nwv}")
        g("s_mul_hi_u32 s13, s12, 0x1999999a")
        g("s_mul_i32 s14, s13, 10")
        g("s_sub_u32 s14, s12, s14")
        g(f"s_mul_i32 s13, s13, {8*RL}")
        g("v_add_u32 v4, s13, v3")
        g("s_lshl_b32 s15, s14, 6")
        g("v_lshl_add_u32 v5, v2, 3, s15")
        g("v_mul_u32_u24 v6, 1280, v4")
        g("v_lshl_add_u32 v6, v5, 1, v6")
        g("v_subrev_u32 v8, 3840, v6")
        g("v_cmp_eq_u32 vcc, 0, v4")
        g("v_lshlrev_b32 v7, 3, v5")
        g(f"v_lshlrev_b32 v{10+u}, 12, v5")
        g("v_cndmask_b32 v8, v8, v9, vcc")
        g(f"v_sub_u32 v4, {2048-RL}, v4")
        g(f"v_lshl_add_u32 v{10+u}, v4, 1, v{10+u}")
        KR = RAW + PER * u
        VR = KR + 4 * NR
        WR = VR + 4 * RL
        for r in range(3):
            g(f"buffer_load_dwordx4 {vr(KR+4*r,4)}, v8, s[20:23], 0 offen offset:{1280*r} {NTI}")
        for r in range(RL):
            g(f"buffer_load_dwordx4 {vr(KR+12+4*r,4)}, v6, s[20:23], 0 offen offset:{1280*r} {NTI}")
        for j in range(4):
            g(f"buffer_load_dwordx4 {vr(WR+4*j,4)}, v7, s[28:31], 0 offen offset:{16*j}")
        for r in range(RL):
            g(f"buffer_load_dwordx4 {vr(VR+4*r,4)}, v6, s[24:27], 0 offen offset:{1280*r} {NTI}")
    g("s_mov_b32 s17, 0xffff0000")
    NL = NR + 4 + RL
    KF = 16
    WF = KF + 12
    T = WF + 4
    OUT = T + 12
    PK = OUT + 8
    NP = RL // 2
    ldone = g.newlabel("a1done")
    for u in range(NU):
        if (u + 1) * nwv > 640:
            g(f"s_add_u32 s12, {s_wv}, {u*nwv}")
            g("s_cmp_ge_u32 s12, 640")
            g(f"s_cbranch_scc1 {ldone}")
        g(f"s_waitcnt vmcnt({NL*(NU-1-u) + 8*u})")
        KR = RAW + PER * u
        VR = KR + 4 * NR
        WR = VR + 4 * RL
        for ch in range(8):
            j, hi = ch // 2, ch % 2
            for r in range(NR):
                src = KR + 4 * r + j
                if hi:
                    g(f"v_and_b32 v{KF+r}, s17, v{src}")
                else:
                    g(f"v_lshlrev_b32 v{KF+r}, 16, v{src}")
            g(f"v_lshlrev_b32 v{WF+0}, 16, v{WR+2*ch}")
            g(f"v_and_b32 v{WF+1}, s17, v{WR+2*ch}")
            g(f"v_lshlrev_b32 v{WF+2}, 16, v{WR+2*ch+1}")
            g(f"v_and_b32 v{WF+3}, s17, v{WR+2*ch+1}")
            for s0 in range(0, RL, 2):
                for uu in range(2):
                    sx = s0 + uu
                    t = T + 6 * uu
                    g(f"v_mul_f32 v{t}, v{KF+sx}, v{WF+3}")
                    g(f"v_mul_f32 v{t+1}, v{KF+sx+1}, v{WF+2}")
                    g(f"v_mul_f32 v{t+2}, v{KF+sx+2}, v{WF+1}")
                    g(f"v_mul_f32 v{t+3}, v{KF+sx+3}, v{WF+0}")
                    src = VR + 4 * sx + j
                    if hi:
                        g(f"v_and_b32 v{t+4}, s17, v{src}")
                    else:
                        g(f"v_lshlrev_b32 v{t+4}, 16, v{src}")
                for uu in range(2):
                    t = T + 6 * uu
                    for q in range(4):
                        g(f"v_cvt_pk_bf16_f32 v{t+q}, 0, v{t+q}")
                for q in range(1, 4):
                    for uu in range(2):
                        t = T + 6 * uu
                        g(f"v_add_f32 v{t}, v{t}, v{t+q}")
                    for uu in range(2):
                        t = T + 6 * uu
                        g(f"v_cvt_pk_bf16_f32 v{t}, 0, v{t}")
                for uu in range(2):
                    t = T + 6 * uu
                    g(f"v_mul_f32 v{OUT+s0+uu}, v{t}, v{t+4}")
            pk = PK + NP * (ch % 4)
            for e in range(NP):
                g(f"v_cvt_pk_bf16_f32 v{pk+e}, v{OUT+RL-1-2*e}, v{OUT+RL-2-2*e}")
            g(f"s_mov_b32 s18, {4096*ch}")
            g(f"buffer_store_dwordx{NP} {vr(pk,NP)}, v{10+u}, s[32:35], s18 offen {STF}")
    g.label(ldone)
    return RAW + PER * NU


def gen_a3(g, s_unit):
    stamp(g, 0)
    g(f"s_load_dwordx2 s[4:5], s[0:1], {KA['q']}")
    g(f"s_load_dwordx2 s[6:7], s[0:1], {KA['out']}")
    g(f"s_load_dwordx2 s[10:11], s[0:1], {KA['ws']}")
    g(f"s_mul_hi_u32 s12, {s_unit}, 0x1999999a")
    g(f"s_mul_i32 s13, s12, 10")
    g(f"s_sub_u32 s13, {s_unit}, s13")
    g("v_and_b32 v1, 63, v0")
    g("v_and_b32 v2, 7, v1")
    g("v_lshrrev_b32 v3, 3, v1")
    g("s_lshl_b32 s14, s12, 6")
    g("v_lshl_add_u32 v4, v3, 3, s14")
    g("s_lshl_b32 s15, s13, 6")
    g("v_lshl_add_u32 v5, v2, 3, s15")
    g("s_movk_i32 s16, 1280")
    g("v_mul_lo_u32 v6, v4, s16")
    g("v_lshl_add_u32 v7, v5, 1, v6")
    g("v_add_u32 v8, 5120, v7")
    g("v_lshlrev_b32 v6, 1, v6")
    g("v_lshl_add_u32 v9, v5, 1, v6")
    g("v_lshlrev_b32 v10, 12, v5")
    g("v_lshl_add_u32 v10, v4, 1, v10")
    g("s_waitcnt lgkmcnt(0)")
    stamp(g, 1)
    make_srd(g, 20, 4, 0, SZ_26)
    make_srd(g, 24, 6, 0, 2 * SZ_26)
    make_srd(g, 28, 10, WS_Y2T, SZ_26)
    QR = 16
    YR = 48
    for r in range(8):
        vo = "v7" if r < 4 else "v8"
        g(f"buffer_load_dwordx4 {vr(QR+4*r,4)}, {vo}, s[20:23], 0 offen offset:{1280*(r%4)} {NTI}")
    for ch in range(8):
        g(f"s_mov_b32 s18, {4096*ch}")
        g(f"buffer_load_dwordx4 {vr(YR+4*ch,4)}, v10, s[28:31], s18 offen {NTM}")
    g("s_mov_b32 s17, 0xffff0000")
    g("s_waitcnt vmcnt(0)")
    stamp(g, 2)
    T = 80
    PK = 96
    for s in range(8):
        for j in range(4):
            t = T + 4 * (j % 2)
            g(f"v_lshlrev_b32 v{t}, 16, v{QR+4*s+j}")
            g(f"v_and_b32 v{t+1}, s17, v{QR+4*s+j}")
            for u in range(2):
                src = YR + 4 * (2 * j + u) + s // 2
                if s % 2:
                    g(f"v_and_b32 v{t+2+u}, s17, v{src}")
                else:
                    g(f"v_lshlrev_b32 v{t+2+u}, 16, v{src}")
            g(f"v_mul_f32 v{t}, v{t}, v{t+2}")
            g(f"v_mul_f32 v{t+1}, v{t+1}, v{t+3}")
            g(f"v_cvt_pk_bf16_f32 v{PK+4*s+j}, v{t}, v{t+1}")
    for s in range(8):
        g(f"s_mov_b32 s18, {2560*s}")
        g(f"buffer_store_dwordx4 {vr(PK+4*s,4)}, v9, s[24:27], s18 offen {NTO}")
    stamp(g, 3)
    if STAMPS: g("s_waitcnt vmcnt(0)")
    stamp_flush(g, 2, 4, 10)
    g("s_endpgm")


G1_NS = 3
G1_STAGE = 16384 + 24576
N_G1_WG = 160
N_AUX_WG = 96


def gen_gemm1(g):
    NS = G1_NS
    NIT = 10
    NPC = 10
    stamp(g, 0)
    g(f"s_load_dwordx4 s[4:7], s[0:1], {KA['x']}")
    g(f"s_load_dwordx2 s[8:9], s[0:1], {KA['ws']}")
    g("s_and_b32 s12, s2, 3")
    g("s_bfe_u32 s13, s2, 0x10002")
    g("s_lshr_b32 s14, s2, 3")
    g("s_lshl_b32 s10, s12, 2")
    g("s_and_b32 s15, s14, 3")
    g("s_add_u32 s10, s10, s15")
    g("s_mul_i32 s11, s13, 5")
    g("s_lshr_b32 s15, s14, 2")
    g("s_add_u32 s11, s11, s15")
    g("v_lshrrev_b32 v1, 6, v0")
    g("v_and_b32 v2, 63, v0")
    g("s_nop 0")
    g("v_readfirstlane_b32 s12, v1")
    g("v_lshrrev_b32 v3, 3, v2")
    g("v_mul_u32_u24 v3, 1280, v3")
    g("v_lshrrev_b32 v4, 4, v2")
    g("v_and_b32 v5, 7, v2")
    g("v_xor_b32 v6, v5, v4")
    g("v_xor_b32 v7, 4, v6")
    g("s_mul_i32 s14, s12, 40960")
    g("v_add_u32 v3, s14, v3")
    g("v_lshl_add_u32 v6, v6, 4, v3")
    g("v_lshl_add_u32 v7, v7, 4, v3")
    g("s_mul_i32 s14, s12, 384")
    VB = [16, 17, 18, 19, 20, 21]
    for i in range(6):
        g(f"v_add_u32 v8, s14, v2")
        if i:
            g(f"v_add_u32 v8, {64*i}, v8")
        g("v_mul_u32_u24 v9, 0xaab, v8")
        g("v_lshrrev_b32 v9, 16, v9")
        g("v_mul_u32_u24 v10, 24, v9")
        g("v_sub_u32 v10, v8, v10")
        g("v_bfe_u32 v11, v9, 1, 1")
        g("v_lshlrev_b32 v11, 2, v11")
        g("v_xor_b32 v10, v10, v11")
        g("v_mul_u32_u24 v9, 3840, v9")
        g(f"v_lshl_add_u32 v{VB[i]}, v10, 4, v9")
    B0 = 22
    g("s_waitcnt lgkmcnt(0)")
    stamp(g, 1)
    make_srd(g, 20, 4, 0, SZ_26)
    make_srd(g, 24, 6, 0, 640 * 3840)
    g("s_mul_i32 s28, s10, 163840")
    g("s_mul_i32 s30, s11, 384")
    g("s_lshl_b32 s32, s12, 12")
    g("s_mul_i32 s33, s12, 6144")
    g("s_and_b32 s34, s10, 3")
    g("s_mul_i32 s34, s34, 5")
    g("s_lshr_b32 s34, s34, 1")
    g("s_mul_i32 s35, s11, 3")
    g("s_add_u32 s34, s34, s35")
    g("s_lshr_b32 s35, s10, 2")
    g("s_add_u32 s34, s34, s35")
    g("s_mul_hi_u32 s35, s34, 0x1999999a")
    g("s_mul_i32 s35, s35, 10")
    g("s_sub_u32 s34, s34, s35")
    g("s_lshl_b32 s35, s34, 7")
    g("s_add_u32 s28, s28, s35")
    g("s_mul_i32 s35, s34, 245760")
    g("s_add_u32 s30, s30, s35")
    g("s_mov_b32 s37, 245760")
    g("s_movk_i32 s38, 128")

    def dma_piece(it, j):
        base = (it % NS) * G1_STAGE
        if j < 4:
            g(f"s_add_u32 m0, s32, {base + 1024*j}")
            if j:
                g(f"s_add_u32 s29, s28, {10240*j}")
            else:
                g("s_nop 0")
            g(f"buffer_load_dwordx4 v{6 + (j & 1)}, s[20:23], s{29 if j else 28} offen {NTW} lds")
        else:
            i = j - 4
            g(f"s_add_u32 m0, s33, {base + 16384 + 1024*i}")
            g("s_nop 0")
            g(f"buffer_load_dwordx4 v{VB[i]}, s[24:27], s30 offen {NTW} lds")
        if j == NPC - 1:
            g("s_add_u32 s34, s34, 1")
            g("s_cmp_eq_u32 s34, 10")
            g(f"s_cselect_b32 s35, {(128-1280) & 0xffffffff:#x}, s38")
            g(f"s_cselect_b32 s36, {(245760-10*245760) & 0xffffffff:#x}, s37")
            g("s_cselect_b32 s34, 0, s34")
            g("s_add_u32 s28, s28, s35")
            g("s_add_u32 s30, s30, s36")

    for it in range(NS - 1):
        for j in range(NPC):
            dma_piece(it, j)
    g("s_lshr_b32 s15, s12, 1")
    g("s_and_b32 s16, s12, 1")
    g("v_and_b32 v8, 31, v2")
    g("v_lshrrev_b32 v9, 5, v2")
    g("v_bfe_u32 v10, v8, 1, 3")
    g("v_xor_b32 v10, v9, v10")
    g("s_lshl_b32 s17, s15, 13")
    g("v_lshl_add_u32 v11, v8, 7, s17")
    B0 = 22
    for ks in range(4):
        g(f"v_xor_b32 v12, {2*ks}, v10")
        g(f"v_lshl_add_u32 v{B0+ks}, v12, 4, v11")
    g("v_bfe_u32 v13, v2, 2, 2")
    g("v_lshl_add_u32 v14, v9, 3, v13")
    g("v_mul_u32_u24 v14, 384, v14")
    g("v_and_b32 v15, 1, v4")
    g("v_lshl_add_u32 v14, v15, 5, v14")
    g("v_and_b32 v15, 3, v2")
    g("v_lshl_add_u32 v14, v15, 3, v14")
    g("v_add_u32 v14, 16384, v14")
    g("v_lshrrev_b32 v13, 1, v13")
    g("s_mul_i32 s17, s16, 3")
    for nt in range(3):
        g(f"s_add_u32 s18, s17, {nt}")
        g("v_xor_b32 v15, s18, v13")
        g(f"v_lshl_add_u32 v{B0+4+nt}, v15, 6, v14")
    for st in range(1, NS):
        for i in range(7):
            g(f"v_add_u32 v{B0+7*st+i}, {st*G1_STAGE}, v{B0+i}")
    assert B0 + 7 * NS <= 52

    ACC = 52
    FR = 148

    def read_list(it, ks, b):
        st = it % NS
        L = []
        for nt in range(3):
            for half in range(2):
                L.append(f"ds_read_b64_tr_b16 {vr(FR+20*b+8+4*nt+2*half,2)}, v{B0+7*st+4+nt} offset:{6144*ks+1536*half}")
            if nt < 2:
                L.append(f"ds_read_b128 {vr(FR+20*b+4*nt,4)}, v{B0+7*st+ks} offset:{4096*nt}")
        return L

    def mfmas(b, orient, first, hooks, rl=()):
        i = 0
        rl = list(rl)
        for nt in range(3):
            for mt in range(2):
                if i > 0:
                    for _ in range(2):
                        if rl:
                            g(rl.pop(0))
                if i in hooks:
                    hooks[i]()
                i += 1
                acc = vr(ACC + 16 * (3 * mt + nt), 16)
                xf = vr(FR + 20 * b + 4 * mt, 4)
                wf = vr(FR + 20 * b + 8 + 4 * nt, 4)
                c = "0" if first else acc
                if orient[nt] == "q":
                    g(f"v_mfma_f32_32x32x16_bf16 {acc}, {wf}, {xf}, {c}")
                else:
                    g(f"v_mfma_f32_32x32x16_bf16 {acc}, {xf}, {wf}, {c}")

    lv = g.newlabel("g1v")
    lm = g.newlabel("g1m")
    g("s_mul_i32 s39, s11, 6")
    g("s_add_u32 s39, s39, s17")
    g("s_cmp_ge_u32 s39, 40")
    g(f"s_cbranch_scc1 {lv}")
    g("s_cmp_eq_u32 s39, 39")
    g(f"s_cbranch_scc1 {lm}")
    for orient in ("qqq", "vvv", "qvv"):
        if orient == "vvv":
            g.label(lv)
        if orient == "qvv":
            g.label(lm)
        for it in range(NIT):
            n = NPC * (min(it + NS - 2, NIT - 1) - it)
            g(f"s_waitcnt vmcnt({n}) lgkmcnt(0)")
            g("s_barrier")
            if it in (0, 3, 6, 9):
                stamp(g, 2 + it // 3)
            pf = it + NS - 1 < NIT
            nx = it + NS - 1
            pieces = list(range(NPC)) if pf else []

            def hk(slots):
                h = {}
                for sl in slots:
                    if pieces:
                        j = pieces.pop(0)
                        h[sl] = (lambda j=j: dma_piece(nx, j))
                return h
            for ks in range(4):
                b = ks % 2
                rl = read_list(it, ks, b)
                if ks > 0 or it > 0:
                    if ks > 0:
                        g("s_waitcnt lgkmcnt(0)")
                    mfmas(1 - b, orient, it == 0 and ks == 1, hk([1, 3, 5] if ks < 2 else [2, 5]), rl)
                else:
                    for r_ in rl:
                        g(r_)
                    for j in range(3):
                        if pieces:
                            dma_piece(nx, pieces.pop(0))
        g("s_waitcnt lgkmcnt(0)")
        mfmas(1, orient, False, {})
        g.nop(16)
        stamp(g, 6)
        if "q" in orient:
            make_srd(g, 40, 8, WS_QK4, SZ_QK4)
            g("v_lshlrev_b32 v21, 14, v9")
            g("v_lshl_add_u32 v21, v8, 3, v21")
            g("s_lshl_b32 s48, s15, 9")
            g("v_add_u32 v21, s48, v21")
            g("s_lshl_b32 s48, s39, 17")
            g("s_lshl_b32 s49, s10, 10")
            g("s_add_u32 s48, s48, s49")
        if "v" in orient:
            make_srd(g, 44, 8, WS_VG, SZ_26)
            g("v_lshlrev_b32 v20, 5, v8")
            g("v_lshl_add_u32 v20, v9, 4, v20")
            g("s_mul_i32 s50, s15, 81920")
            g("v_add_u32 v20, s50, v20")
            g("s_mul_i32 s50, s10, 163840")
            g("s_lshl_b32 s51, s39, 10")
            g("s_add_u32 s50, s50, s51")
            g(f"s_sub_u32 s50, s50, {40*1024}")
        k = 0
        for nt in range(3):
            if orient[nt] == "q":
                for a in range(4):
                    g(f"s_add_u32 s49, s48, {(8*nt+2*a)*16384}")
                    for mt in range(2):
                        acc = ACC + 16 * (3 * mt + nt) + 4 * a
                        t = FR + 4 * (k % 8)
                        k += 1
                        g(f"v_cvt_pk_bf16_f32 v{t}, v{acc}, v{acc+1}")
                        g(f"v_cvt_pk_bf16_f32 v{t+1}, v{acc+2}, v{acc+3}")
                        g(f"buffer_store_dwordx2 {vr(t,2)}, v21, s[40:43], s49 offen offset:{256*mt} {STF}")
            else:
                for mt in range(2):
                    for ap in range(2):
                        g(f"s_add_u32 s51, s50, {(2*mt+ap)*20480 + nt*1024}")
                        acc = ACC + 16 * (3 * mt + nt) + 8 * ap
                        t = FR + 4 * (k % 8)
                        k += 1
                        for e in range(4):
                            g(f"v_cvt_pk_bf16_f32 v{t+e}, v{acc+2*e}, v{acc+2*e+1}")
                        g(f"buffer_store_dwordx4 {vr(t,4)}, v20, s[44:47], s51 offen {STF}")
        stamp(g, 7)
        if STAMPS: g("s_waitcnt vmcnt(0)")
        stamp_flush(g, 0, 8, 8)
        dbg_end(g, 0)
        g("s_endpgm")


def gen_k1(g):
    name = "k1_kernel"
    kernel_begin(g, name)
    lend = g.newlabel("end")
    lpf = g.newlabel("aux")
    g(f"s_cmp_ge_u32 s2, {N_G1_WG}")
    g(f"s_cbranch_scc1 {lpf}")
    gen_gemm1(g)
    g.label(lpf)
    g(f"s_cmp_ge_u32 s2, {N_G1_WG+N_AUX_WG}")
    g(f"s_cbranch_scc1 {lend}")
    stamp(g, 0)
    g("v_lshrrev_b32 v1, 6, v0")
    g(f"s_sub_u32 s3, s2, {N_G1_WG}")
    g("s_lshl_b32 s3, s3, 2")
    g("v_readfirstlane_b32 s19, v1")
    g("s_nop 3")
    g("s_add_u32 s3, s3, s19")
    gen_a1_multi(g, "s3", N_AUX_WG * 4)
    stamp(g, 1)
    if PF_LIST:
        gen_prefetch(g, N_G1_WG, N_AUX_WG, PF_LIST)
    if STAMPS:
        g("s_waitcnt vmcnt(0)")
        g(f"s_load_dwordx2 s[8:9], s[0:1], {KA['ws']}")
        g("s_waitcnt lgkmcnt(0)")
    stamp_flush(g, 0, 2, 8)
    g.label(lend)
    g("s_endpgm")
    return name


N_PF_WG = 0
PF_LIST = ['ssmk', 'wo', 'q']
PF_SIZE = dict(k=SZ_26, v=SZ_26, ssmk=SZ_26, wo=640 * 1280, q=SZ_26)


def gen_prefetch(g, id0, nwg, names):
    for i, nm in enumerate(names):
        g(f"s_load_dwordx2 s[{4+2*i}:{5+2*i}], s[0:1], {KA[nm]}")
    g(f"s_sub_u32 s3, s2, {id0}")
    g("v_lshlrev_b32 v1, 4, v0")
    g("s_lshl_b32 s3, s3, 12")
    g("v_add_u32 v1, s3, v1")
    g("s_waitcnt lgkmcnt(0)")
    step = nwg * 4096
    for i, nm in enumerate(names):
        make_srd(g, 20, 4 + 2 * i, 0, PF_SIZE[nm])
        n = (PF_SIZE[nm] + step - 1) // step
        lp = g.newlabel("pfl")
        g("s_mov_b32 s24, 0")
        g.label(lp)
        for u in range(4):
            g(f"buffer_load_dwordx4 v[{4+4*u}:{7+4*u}], v1, s[20:23], s24 offen")
            g(f"s_add_u32 s24, s24, {step}")
        g("s_waitcnt vmcnt(24)")
        g(f"s_cmp_lt_u32 s24, {n*step}")
        g(f"s_cbranch_scc1 {lp}")


CV_COPY = 4160
CV_X = 4 * CV_COPY
N_CONV_WG = 640
CONV_PRIO = 2
ATT_PRIO = 0
ATT_PRIO2 = None


def gen_conv(g):
    stamp(g, 0)
    if CONV_PRIO:
        g(f"s_setprio {CONV_PRIO}")
    g(f"s_load_dwordx4 s[4:7], s[0:1], {KA['ssmk']}")
    g(f"s_load_dwordx2 s[8:9], s[0:1], {KA['ws']}")
    g("v_lshrrev_b32 v1, 6, v0")
    g("v_and_b32 v2, 63, v0")
    g("s_nop 0")
    g("v_readfirstlane_b32 s12, v1")
    g("s_lshl_b32 s16, s3, 12")
    g("v_lshlrev_b32 v4, 4, v0")
    g("s_waitcnt lgkmcnt(0)")
    stamp(g, 1)
    g("s_lshl_b32 s18, s3, 1")
    g("s_and_b32 s18, s18, 0xfffffffc")
    g("s_load_dword s19, s[6:7], s18")
    make_srd(g, 20, 4, 0, SZ_26)
    make_srd(g, 24, 8, WS_XR, SZ_26)
    make_srd(g, 28, 8, WS_Y2T, SZ_26)
    H = 8
    X = 20
    for j in range(3):
        g(f"buffer_load_dwordx4 {vr(H+4*j,4)}, v4, s[20:23], s16 offen offset:{4*j} {NTH}")
    g(f"buffer_load_dwordx4 {vr(X,4)}, v4, s[24:27], s16 offen {NTM}")
    for i in range(4):
        g(f"v_mov_b32 v{44+i}, 0")
    g("v_cmp_gt_u32 vcc, 30, v0")
    g("s_and_saveexec_b64 s[32:33], vcc")
    g(f"ds_write_b128 v4, v[44:47] offset:{CV_X+4096}")
    g("s_mov_b64 exec, s[32:33]")
    g("v_and_b32 v6, 15, v2")
    g("v_lshrrev_b32 v7, 4, v2")
    g("v_add_u32 v32, 1, v6")
    g("v_and_b32 v33, 3, v32")
    g(f"v_mul_u32_u24 v33, {CV_COPY}, v33")
    g("v_lshrrev_b32 v32, 2, v32")
    g("v_lshl_add_u32 v33, v32, 3, v33")
    g("v_lshl_add_u32 v33, v7, 4, v33")
    g("s_lshl_b32 s35, s12, 7")
    g("v_add_u32 v3, s35, v33")
    g("v_lshlrev_b32 v32, 5, v6")
    g(f"v_sub_u32 v32, {CV_X+4064-3584}, v32")
    g("v_lshl_add_u32 v32, v7, 4, v32")
    g("v_add_u32 v5, s35, v32")
    g("s_waitcnt vmcnt(0)")
    stamp(g, 2)
    T = 24
    A, B, C = H, H + 4, H + 8
    for j in range(4):
        g(f"v_alignbyte_b32 v{T+j}, v{B+j}, v{A+j}, 2")
    for j in range(4):
        g(f"v_alignbyte_b32 v{T+4+j}, v{C+j}, v{B+j}, 2")
    g(f"ds_write_b128 v4, {vr(A,4)} offset:{0*CV_COPY+32}")
    g(f"ds_write_b128 v4, {vr(T,4)} offset:{1*CV_COPY+32}")
    g(f"ds_write_b128 v4, {vr(B,4)} offset:{2*CV_COPY+32}")
    g(f"ds_write_b128 v4, {vr(T+4,4)} offset:{3*CV_COPY+32}")
    g(f"ds_write_b128 v4, {vr(X,4)} offset:{CV_X}")
    g("v_cmp_eq_u32 vcc, 0, v0")
    g("s_and_saveexec_b64 s[32:33], vcc")
    g(f"v_lshlrev_b32 v34, 16, v{A}")
    g(f"v_alignbyte_b32 v35, v{A+1}, v{A}, 2")
    for sg in range(4):
        g(f"ds_write_b128 v4, v[44:47] offset:{sg*CV_COPY}")
    g(f"ds_write_b128 v4, v[44:47] offset:{0*CV_COPY+16}")
    g("v_mov_b32 v36, 0")
    g("v_mov_b32 v37, 0")
    g("v_mov_b32 v38, 0")
    g("v_mov_b32 v39, v34")
    g(f"ds_write_b128 v4, v[36:39] offset:{1*CV_COPY+16}")
    g("v_mov_b32 v40, 0")
    g("v_mov_b32 v41, 0")
    g("v_mov_b32 v42, 0")
    g(f"v_mov_b32 v43, v{A}")
    g(f"ds_write_b128 v4, v[40:43] offset:{2*CV_COPY+16}")
    g("v_mov_b32 v48, 0")
    g("v_mov_b32 v49, 0")
    g("v_mov_b32 v50, v34")
    g("v_mov_b32 v51, v35")
    g(f"ds_write_b128 v4, v[48:51] offset:{3*CV_COPY+16}")
    g("s_mov_b64 exec, s[32:33]")
    g("s_waitcnt lgkmcnt(0)")
    g("s_barrier")
    stamp(g, 3)
    ACC = 16
    FR = 48

    def rdA(rp, mu):
        g(f"ds_read_b64 {vr(FR+4*mu,2)}, v3 offset:{64*(8*mu+rp)}")
        g(f"ds_read_b64 {vr(FR+4*mu+2,2)}, v3 offset:{64*(8*mu+rp)+8}")

    def rdB(rp, tau):
        g(f"ds_read_b128 {vr(FR+32+4*tau,4)}, v5 offset:{64*(56-8*tau+rp)}")

    def mf(mu, tau, first=False):
        t = mu + tau
        acc = vr(ACC + 4 * t, 4)
        c = "0" if first else acc
        g(f"v_mfma_f32_16x16x32_bf16 {acc}, {vr(FR+4*mu,4)}, {vr(FR+32+4*tau,4)}, {c}")

    g("v_lshlrev_b32 v14, 5, v6")
    g("v_lshl_add_u32 v14, v7, 3, v14")
    g(f"v_sub_u32 v15, {CV_X+4088-512}, v14")
    g("s_lshl_b32 s36, s12, 10")
    g("v_subrev_u32 v15, s36, v15")
    KV = 112
    g(f"ds_read_b64 {vr(KV,2)}, v15 offset:512")
    g(f"ds_read_b64 {vr(KV+2,2)}, v15 offset:0")
    rdA(0, 0)
    for tau in range(8):
        rdB(0, tau)
    for mu in range(1, 8):
        rdA(0, mu)
    for mu in range(8):
        n = 2 * (7 - mu) + 3 * mu
        g(f"s_waitcnt lgkmcnt({min(n,15)})")
        for tau in range(8 - mu):
            mf(mu, tau, first=(mu == 0))
        rdA(1, mu)
        rdB(1, 7 - mu)
    for k in range(8):
        g(f"s_waitcnt lgkmcnt({min(3*(7-k),15)})")
        for mu in range(k + 1):
            mf(mu, 7 - k)
    g("s_barrier")
    stamp(g, 4)
    g("v_lshlrev_b32 v11, 4, v2")
    ljoin = g.newlabel("cvj")
    lw = [g.newlabel("cvw") for _ in range(4)]
    for w in range(1, 4):
        g(f"s_cmp_eq_u32 s12, {w}")
        g(f"s_cbranch_scc1 {lw[w]}")
    for w in range(4):
        g.label(lw[w])
        g.nop(4)
        for o in range(4):
            if o == w:
                continue
            j = w if w < o else w - 1
            for u in range(2):
                g(f"ds_write_b128 v11, {vr(ACC+4*(2*o+u),4)} offset:{((o*3+j)*2+u)*1024}")
        if w:
            for i in range(8):
                g(f"v_mov_b32 v{ACC+i}, v{ACC+8*w+i}")
        if w < 3:
            g(f"s_branch {ljoin}")
    g.label(ljoin)
    g("s_mul_i32 s36, s12, 6144")
    g("v_add_u32 v11, s36, v11")
    g("s_waitcnt lgkmcnt(0)")
    g("s_barrier")
    P = 48
    for j in range(6):
        g(f"ds_read_b128 {vr(P+4*j,4)}, v11 offset:{1024*j}")
    g("s_and_b32 s18, s3, 1")
    g("s_lshl_b32 s18, s18, 4")
    g("s_lshr_b32 s19, s19, s18")
    g("s_lshl_b32 s19, s19, 16")
    g("s_mov_b32 s37, 0xffff0000")
    g("s_lshl_b32 s36, s12, 10")
    g("s_add_u32 s36, s36, s16")
    U = 72
    for u in range(2):
        g(f"v_and_b32 v{U+4*u+0}, s37, v{KV+2*u+1}")
        g(f"v_lshlrev_b32 v{U+4*u+1}, 16, v{KV+2*u+1}")
        g(f"v_and_b32 v{U+4*u+2}, s37, v{KV+2*u}")
        g(f"v_lshlrev_b32 v{U+4*u+3}, 16, v{KV+2*u}")
        for r in range(4):
            g(f"v_mul_f32 v{U+4*u+r}, s19, v{U+4*u+r}")
        for r in range(4):
            g(f"v_cvt_pk_bf16_f32 v{U+4*u+r}, 0, v{U+4*u+r}")
    g("s_waitcnt lgkmcnt(0)")
    for u in range(2):
        a = ACC + 4 * u
        for j in range(3):
            for r in range(4):
                g(f"v_add_f32 v{a+r}, v{a+r}, v{P+4*(2*j+u)+r}")
        for r in range(4):
            g(f"v_cvt_pk_bf16_f32 v{a+r}, 0, v{a+r}")
        for r in range(4):
            g(f"v_add_f32 v{a+r}, v{a+r}, v{U+4*u+r}")
        g(f"v_cvt_pk_bf16_f32 v{a}, v{a}, v{a+1}")
        g(f"v_cvt_pk_bf16_f32 v{a+1}, v{a+2}, v{a+3}")
        g(f"buffer_store_dwordx2 {vr(a,2)}, v14, s[28:31], s36 offen offset:{512*u} {STF}")
    stamp(g, 5)
    if STAMPS: g("s_waitcnt vmcnt(0)")
    stamp_flush(g, 1, 6, 8)
    g("s_endpgm")


AT_K = 0
AT_V = 15360
AT_VG = 1008
AT_LDS = AT_V + 24 * AT_VG
NEG = 0xFF800000


def gen_attn(g):
    stamp(g, 0)
    if ATT_PRIO:
        g(f"s_setprio {ATT_PRIO}")
    g(f"s_load_dwordx2 s[8:9], s[0:1], {KA['ws']}")
    g("v_lshrrev_b32 v1, 6, v0")
    g("v_and_b32 v2, 63, v0")
    g("s_nop 0")
    g("v_readfirstlane_b32 s12, v1")
    g("s_lshl_b32 s13, s11, 7")
    g("s_sub_u32 s14, s13, 256")
    g("s_waitcnt lgkmcnt(0)")
    stamp(g, 1)
    make_srd(g, 20, 8, WS_QK4, SZ_QK4)
    make_srd(g, 24, 8, WS_VG, SZ_26)
    make_srd(g, 28, 8, WS_O4, SZ_26)
    g("s_mul_i32 s15, s10, 5")
    g("s_add_u32 s16, s15, 160")
    g("s_lshl_b32 s16, s16, 14")
    g("s_lshl_b32 s17, s14, 3")
    g("s_add_u32 s16, s16, s17")
    g("v_lshlrev_b32 v3, 4, v0")
    QF = 16
    KF = 24
    VF = 40
    M = 52
    O = 56
    S = 72
    MK = 120
    ST = 72
    lskip = g.newlabel("atk")
    g("s_cmp_eq_u32 s12, 3")
    g(f"s_cbranch_scc1 {lskip}")
    for j in range(5):
        g(f"s_add_u32 s17, s16, {16384*j}")
        g(f"buffer_load_dwordx4 {vr(ST+4*j,4)}, v3, s[20:23], s17 offen")
    g.label(lskip)
    g("v_mul_u32_u24 v4, 0x667, v0")
    g("v_lshrrev_b32 v4, 16, v4")
    g("v_mul_u32_u24 v5, 40, v4")
    g("v_sub_u32 v5, v0, v5")
    g("s_ashr_i32 s17, s14, 4")
    g("v_add_u32 v6, s17, v4")
    g("s_movk_i32 s18, 20480")
    g("v_mul_lo_u32 v6, v6, s18")
    g("s_mul_i32 s18, s10, 640")
    g("v_lshl_add_u32 v6, v5, 4, v6")
    g("v_add_u32 v6, s18, v6")
    g(f"v_mul_u32_u24 v7, {AT_VG}, v4")
    g("v_lshrrev_b32 v8, 1, v5")
    g("v_mul_u32_u24 v8, 48, v8")
    g("v_add_u32 v7, v7, v8")
    g("v_and_b32 v8, 1, v5")
    g("v_lshl_add_u32 v7, v8, 4, v7")
    g("v_cmp_gt_u32 vcc, 240, v0")
    g("s_and_saveexec_b64 s[32:33], vcc")
    for it in range(4):
        if it:
            g(f"v_add_u32 v6, {6*20480}, v6")
        g(f"buffer_load_dwordx4 {vr(ST+20+4*it,4)}, v6, s[24:27], 0 offen")
    g("s_mov_b64 exec, s[32:33]")
    g("v_and_b32 v8, 31, v2")
    g("v_lshrrev_b32 v9, 5, v2")
    g("s_lshl_b32 s17, s12, 5")
    g("s_add_u32 s38, s17, s13")
    g("v_add_u32 v10, s38, v8")
    g("v_lshlrev_b32 v10, 3, v10")
    g("v_lshl_add_u32 v11, v9, 15, v10")
    g("s_lshl_b32 s18, s15, 14")
    g(f"buffer_load_dwordx2 {vr(QF,2)}, v11, s[20:23], s18 offen")
    g("s_add_u32 s19, s18, 16384")
    g(f"buffer_load_dwordx2 {vr(QF+2,2)}, v11, s[20:23], s19 offen")
    g("s_add_u32 s19, s18, 65536")
    g(f"buffer_load_dwordx2 {vr(QF+4,2)}, v10, s[20:23], s19 offen")
    g("v_lshrrev_b32 v12, 1, v0")
    g(f"v_mul_u32_u24 v12, {AT_VG}, v12")
    g("v_and_b32 v13, 1, v0")
    g("v_lshl_add_u32 v12, v13, 4, v12")
    for i in range(4):
        g(f"v_mov_b32 v{O+i}, 0x3f803f80")
    g("v_cmp_gt_u32 vcc, 48, v0")
    g("s_and_saveexec_b64 s[32:33], vcc")
    g(f"ds_write_b128 v12, {vr(O,4)} offset:{AT_V+960}")
    g("s_mov_b64 exec, s[32:33]")
    g("v_lshlrev_b32 v13, 2, v9")
    g("v_sub_u32 v13, v8, v13")
    for r in range(16):
        c = 8 * (r >> 2) + (r & 3)
        g(f"v_cmp_gt_i32 s[{40+2*r}:{41+2*r}], {c}, v13")
    g("s_lshl_b32 s17, s12, 8")
    g("v_lshl_add_u32 v14, v8, 3, s17")
    g("v_mul_u32_u24 v15, 6144, v9")
    g("v_add_u32 v15, v15, v14")
    g("v_min_u32 v12, 20, v8")
    g("v_cmp_lt_u32 vcc, 27, v8")
    g("v_mov_b32 v13, 4")
    g("s_nop 1")
    g("v_cndmask_b32 v12, v12, v13, vcc")
    g("v_mul_u32_u24 v12, 48, v12")
    g("v_lshl_add_u32 v12, v9, 4, v12")
    g(f"s_mul_i32 s17, s12, {2*AT_VG}")
    g(f"s_add_u32 s17, s17, {AT_V}")
    g("v_add_u32 v12, s17, v12")
    g(f"v_mov_b32 v13, {NEG:#x}")
    for b in range(2):
        g(f"v_mov_b32 v{KF+8*b+6}, 0")
        g(f"v_mov_b32 v{KF+8*b+7}, 0")
    g(f"v_mov_b32 v{QF+6}, 0")
    g(f"v_mov_b32 v{QF+7}, 0")
    g("v_cmp_eq_u32 s[34:35], 1, v9")
    import struct
    c = (20 ** -0.5) * 1.4426950408889634
    cb = struct.unpack("<I", struct.pack("<f", c))[0]
    g(f"s_mov_b32 s36, {cb:#x}")
    g(f"s_mov_b32 s37, {cb:#x}")
    g(f"s_mov_b32 s39, {cb | 0x80000000:#x}")
    g(f"v_mov_b32 v{M}, 0xffff")
    g(f"v_mov_b32 v{M+1}, 0xffff0000")
    for j in range(8):
        g(f"v_cndmask_b32 v{MK+j}, 0, v{M}, s[{40+4*j}:{41+4*j}]")
        g(f"v_cndmask_b32 v{M+2}, 0, v{M+1}, s[{42+4*j}:{43+4*j}]")
        g(f"v_or_b32 v{MK+j}, v{MK+j}, v{M+2}")
    g("s_waitcnt vmcnt(3)")
    stamp(g, 2)
    lskip = g.newlabel("atk")
    g("s_cmp_eq_u32 s12, 3")
    g(f"s_cbranch_scc1 {lskip}")
    for j in range(5):
        g(f"ds_write_b128 v3, {vr(ST+4*j,4)} offset:{AT_K+3072*j}")
    g.label(lskip)
    g("v_cmp_gt_u32 vcc, 240, v0")
    g("s_and_saveexec_b64 s[32:33], vcc")
    for it in range(4):
        g(f"ds_write_b128 v7, {vr(ST+20+4*it,4)} offset:{AT_V+6*AT_VG*it}")
    g("s_mov_b64 exec, s[32:33]")
    g("s_waitcnt vmcnt(0)")
    g(f"v_cndmask_b32 v{QF+4}, v{QF+4}, 0, s[34:35]")
    g(f"v_cndmask_b32 v{QF+5}, v{QF+5}, 0, s[34:35]")
    g("s_waitcnt lgkmcnt(0)")
    g("s_barrier")
    stamp(g, 3)
    if ATT_PRIO2 is not None:
        g(f"s_setprio {ATT_PRIO2}")

    def kreads(tau, b):
        g(f"ds_read_b64 {vr(KF+8*b,2)}, v15 offset:{256*tau}")
        g(f"ds_read_b64 {vr(KF+8*b+2,2)}, v15 offset:{256*tau+3072}")
        g(f"ds_read_b64 {vr(KF+8*b+4,2)}, v14 offset:{256*tau+4*3072}")

    chunks = [[0, 8, 1], [2, 3, 4], [5, 6, 7]]
    korder = [t for c in chunks for t in c]
    vorder = []
    for c in chunks:
        for t in c:
            vorder += [2 * t, 2 * t + 1]

    def vread(i):
        g(f"ds_read_b128 {vr(VF+4*(i%3),4)}, v12 offset:{AT_VG*vorder[i]}")

    kreads(korder[0], 0)
    for ch in range(3):
        for tl in range(3):
            ki = 3 * ch + tl
            b = ki % 2
            if tl < 2:
                kreads(korder[ki + 1], 1 - b)
                g("s_waitcnt lgkmcnt(3)")
            else:
                vread(6 * ch)
                vread(6 * ch + 1)
                g("s_waitcnt lgkmcnt(2)")
            sreg = vr(S + 16 * tl, 16)
            g(f"v_mfma_f32_32x32x16_bf16 {sreg}, {vr(KF+8*b,4)}, {vr(QF,4)}, 0")
            g(f"v_mfma_f32_32x32x16_bf16 {sreg}, {vr(KF+8*b+4,4)}, {vr(QF+4,4)}, {sreg}")
        g.nop(12)
        lok = g.newlabel("atok")
        for tl in range(3):
            tau = chunks[ch][tl]
            if tau == 8:
                continue
            g(f"s_cmp_ge_u32 s38, {256-32*tau}")
            g(f"s_cbranch_scc1 {lok}")
            for r in range(16):
                g(f"v_mov_b32 v{S+16*tl+r}, v13")
        g.label(lok)
        if ch == 0:
            for r in range(16):
                g(f"v_cndmask_b32 v{S+16+r}, v{S+16+r}, v{S+r}, s[{40+2*r}:{41+2*r}]")
            lo, n = S + 16, 32
        else:
            lo, n = S, 48
        g(f"v_max3_f32 v{M+2}, v{lo}, v{lo+1}, v{lo+2}")
        g(f"v_max3_f32 v{M+3}, v{lo+3}, v{lo+4}, v{lo+5}")
        i = 6
        k = 0
        while i < n:
            g(f"v_max3_f32 v{M+2+k}, v{M+2+k}, v{lo+i}, v{lo+i+1}")
            k ^= 1
            i += 2
        g(f"v_max_f32 v{M+2}, v{M+2}, v{M+3}")
        g(f"v_mov_b32 v{M+3}, v{M+2}")
        g("s_nop 1")
        g(f"v_permlane32_swap_b32 v{M+2}, v{M+3}")
        g("s_nop 1")
        g(f"v_max_f32 v{M+2}, v{M+2}, v{M+3}")
        if ch == 0:
            g(f"v_mul_f32 v{M}, s39, v{M+2}")
            g(f"v_min_f32 v{M}, 0x7f7fffff, v{M}")
            g(f"v_mov_b32 v{M+1}, v{M}")
        else:
            g(f"v_mul_f32 v{M+2}, s39, v{M+2}")
            g(f"v_min_f32 v{M+2}, v{M+2}, v{M}")
            g(f"v_sub_f32 v{M+3}, v{M+2}, v{M}")
            g(f"v_exp_f32 v{M+3}, v{M+3}")
            g(f"v_mov_b32 v{M}, v{M+2}")
            g(f"v_mov_b32 v{M+1}, v{M+2}")
            for r in range(16):
                g(f"v_mul_f32 v{O+r}, v{O+r}, v{M+3}")
        if ch < 2:
            kreads(korder[3 * ch + 3], (3 * ch + 3) % 2)
        li = 0
        for tl in range(3):
            if ch == 0 and tl == 0:
                continue
            sb = S + 16 * tl
            for r in range(0, 16, 2):
                g(f"v_pk_fma_f32 {vr(sb+r,2)}, {vr(sb+r,2)}, s[36:37], {vr(M,2)}")
            for r in range(16):
                g(f"v_exp_f32 v{sb+r}, v{sb+r}")
            g("s_nop 0")
            for j in range(8):
                g(f"v_cvt_pk_bf16_f32 v{sb+j}, v{sb+2*j}, v{sb+2*j+1}")
            srcs = [sb]
            if ch == 0 and tl == 1:
                for j in range(8):
                    g(f"v_and_b32 v{S+j}, v{MK+j}, v{sb+j}")
                for j in range(8):
                    g(f"v_xor_b32 v{sb+j}, v{S+j}, v{sb+j}")
                srcs = [S, sb]
            for sp in srcs:
                for kp in range(2):
                    idx = 6 * ch + li
                    if li + 2 < 6:
                        vread(idx + 2)
                    extra = 3 if (ch < 2 and li < 2) else 0
                    nn = min(2, 5 - li) + extra
                    g(f"s_waitcnt lgkmcnt({nn})")
                    cc = "0" if idx == 0 else vr(O, 16)
                    if kp == 0:
                        g("s_nop 0")
                    g(f"v_mfma_f32_32x32x16_bf16 {vr(O,16)}, {vr(VF+4*(idx%3),4)}, {vr(sp+4*kp,4)}, {cc}")
                    li += 1
    g.nop(14)
    stamp(g, 5)
    g(f"v_cndmask_b32 v{M}, v{O+12}, v{O+8}, s[34:35]")
    g(f"v_rcp_f32 v{M}, v{M}")
    g("v_lshl_add_u32 v11, v9, 14, v10")
    for r in range(12):
        g(f"v_mul_f32 v{O+r}, v{O+r}, v{M}")
    for a in range(3):
        g(f"v_cvt_pk_bf16_f32 v{S+2*a}, v{O+4*a}, v{O+4*a+1}")
        g(f"v_cvt_pk_bf16_f32 v{S+2*a+1}, v{O+4*a+2}, v{O+4*a+3}")
    for a in range(3):
        g(f"s_add_u32 s19, s18, {2*a*16384}")
        if a == 2:
            g("s_andn2_b64 exec, exec, s[34:35]")
        g(f"buffer_store_dwordx2 {vr(S+2*a,2)}, v11, s[28:31], s19 offen {STF}")
    if STAMPS: g("s_waitcnt vmcnt(0)")
    stamp_flush(g, 1, 6, 8)
    dbg_end(g, 1)
    g("s_endpgm")


def gen_k2(g):
    name = "k2_kernel"
    kernel_begin(g, name)
    lat = g.newlabel("attn")
    lend = g.newlabel("end")
    g("s_cmp_ge_u32 s2, 1152")
    g(f"s_cbranch_scc1 {lend}")
    g("s_cmp_lt_u32 s2, 512")
    g(f"s_cbranch_scc1 {lat}")
    g("s_sub_u32 s3, s2, 512")
    gen_conv(g)
    g.label(lat)
    g("s_and_b32 s4, s2, 7")
    g("s_lshr_b32 s5, s2, 3")
    g("s_lshr_b32 s10, s5, 4")
    g("s_lshl_b32 s10, s10, 3")
    g("s_add_u32 s10, s10, s4")
    g("s_and_b32 s11, s5, 15")
    gen_attn(g)
    g.label(lend)
    g("s_endpgm")
    return name


G2_NS = 5
G2_STAGE = 12288


def gen_gemm2(g):
    NS = G2_NS
    NIT = 20
    stamp(g, 0)
    g(f"s_load_dwordx4 s[4:7], s[0:1], {KA['wo']}")
    g(f"s_load_dwordx2 s[8:9], s[0:1], {KA['ws']}")
    g("s_and_b32 s10, s2, 7")
    g("s_lshr_b32 s11, s2, 3")
    g("s_and_b32 s12, s11, 1")
    g("s_lshl_b32 s10, s10, 1")
    g("s_add_u32 s10, s10, s12")
    g("s_lshr_b32 s11, s11, 1")
    g("v_lshrrev_b32 v1, 6, v0")
    g("v_and_b32 v2, 63, v0")
    g("s_nop 0")
    g("v_readfirstlane_b32 s12, v1")
    g("v_lshlrev_b32 v3, 4, v2")
    g("s_lshl_b32 s14, s12, 15")
    g("v_add_u32 v3, s14, v3")
    g("v_lshrrev_b32 v4, 3, v2")
    g("s_movk_i32 s13, 1280")
    g("v_mul_lo_u32 v7, v4, s13")
    g("v_bfe_u32 v5, v2, 2, 1")
    g("v_bfe_u32 v6, v2, 4, 1")
    g("v_xor_b32 v5, v5, v6")
    g("v_lshl_add_u32 v7, v5, 6, v7")
    g("v_and_b32 v5, 3, v2")
    g("v_lshl_add_u32 v7, v5, 4, v7")
    g("s_mul_i32 s14, s12, 10240")
    g("v_add_u32 v7, s14, v7")
    g("s_lshr_b32 s15, s12, 1")
    g("s_and_b32 s16, s12, 1")
    g("v_and_b32 v8, 31, v2")
    g("v_lshrrev_b32 v9, 5, v2")
    g("s_lshl_b32 s17, s15, 9")
    g("v_lshl_add_u32 v11, v8, 3, s17")
    g("v_lshl_add_u32 v11, v9, 11, v11")
    g("v_bfe_u32 v13, v2, 2, 2")
    g("v_lshl_add_u32 v14, v9, 3, v13")
    g("v_lshlrev_b32 v14, 7, v14")
    g("v_bfe_u32 v15, v2, 4, 1")
    g("v_lshl_add_u32 v14, v15, 5, v14")
    g("v_lshl_add_u32 v14, v5, 3, v14")
    g("v_add_u32 v14, 8192, v14")
    g("v_lshrrev_b32 v15, 1, v13")
    g("v_xor_b32 v15, s16, v15")
    g("v_lshl_add_u32 v15, v15, 6, v14")
    g("s_waitcnt lgkmcnt(0)")
    stamp(g, 1)
    make_srd(g, 20, 8, WS_O4, SZ_26)
    make_srd(g, 24, 4, 0, 640 * 1280)
    g("s_lshl_b32 s28, s10, 10")
    g("s_add_u32 s29, s28, 16384")
    g("s_lshl_b32 s30, s11, 7")
    g("s_lshl_b32 s32, s12, 11")
    g("s_lshl_b32 s33, s12, 10")
    g("s_lshl_b32 s34, s11, 1")
    g("s_mul_i32 s35, s10, 7")
    g("s_add_u32 s34, s34, s35")
    g("s_mul_hi_u32 s35, s34, 0xccccccd")
    g("s_mul_i32 s35, s35, 20")
    g("s_sub_u32 s34, s34, s35")
    g("s_lshl_b32 s35, s34, 17")
    g("s_add_u32 s28, s28, s35")
    g("s_add_u32 s29, s29, s35")
    g("s_mul_i32 s35, s34, 40960")
    g("s_add_u32 s30, s30, s35")
    g(f"s_mov_b32 s37, {8*16384}")
    g(f"s_mov_b32 s31, {32*1280}")

    def dma_piece(it, j):
        base = (it % NS) * G2_STAGE
        sm, off, vo, srd, so, inc = [(32, 0, 3, 20, 28, 35), (32, 1024, 3, 20, 29, 35), (33, 8192, 7, 24, 30, 36)][j]
        if j == 0:
            g("s_add_u32 s34, s34, 1")
            g("s_cmp_eq_u32 s34, 20")
            g(f"s_cselect_b32 s35, {(8*16384-160*16384) & 0xffffffff:#x}, s37")
            g(f"s_cselect_b32 s36, {(32*1280-640*1280) & 0xffffffff:#x}, s31")
            g("s_cselect_b32 s34, 0, s34")
        g(f"s_add_u32 m0, s{sm}, {base+off}")
        g("s_nop 0")
        g(f"buffer_load_dwordx4 v{vo}, s[{srd}:{srd+3}], s{so} offen lds")
        g(f"s_add_u32 s{so}, s{so}, s{inc}")

    def issue_dma(it):
        for j in range(3):
            dma_piece(it, j)

    for it in range(NS - 1):
        issue_dma(it)
    ACC = 32
    FR = 64

    def read_list(it, ks, b):
        base = (it % NS) * G2_STAGE
        L = []
        for half in range(2):
            L.append(f"ds_read_b64_tr_b16 {vr(FR+12*b+8+2*half,2)}, v15 offset:{base+2048*ks+512*half}")
        for mt in range(2):
            for a in range(2):
                L.append(f"ds_read_b64 {vr(FR+12*b+4*mt+2*a,2)}, v11 offset:{base+4096*ks+1024*a+256*mt}")
        return L

    def mfmas(b, first, after=((), ())):
        for mt in range(2):
            acc = vr(ACC + 16 * mt, 16)
            c = "0" if first else acc
            g(f"v_mfma_f32_32x32x16_bf16 {acc}, {vr(FR+12*b+8,4)}, {vr(FR+12*b+4*mt,4)}, {c}")
            for x in after[mt]:
                if callable(x):
                    x()
                else:
                    g(x)

    for it in range(NIT):
        n = 3 * (min(it + NS - 2, NIT - 1) - it)
        g(f"s_waitcnt vmcnt({n}) lgkmcnt(0)")
        g("s_barrier")
        if it in (0, 5, 10, 15):
            stamp(g, 2 + it // 5)
        pf = it + NS - 1 < NIT
        nx = it + NS - 1
        d = [(lambda j=j: dma_piece(nx, j)) for j in range(3)] if pf else [(lambda: None)] * 3
        r0 = read_list(it, 0, 0)
        r1 = read_list(it, 1, 1)
        if it > 0:
            mfmas(1, False, (r0[:3], r0[3:] + [d[0]]))
        else:
            for x in r0:
                g(x)
            d[0]()
        g("s_waitcnt lgkmcnt(0)")
        mfmas(0, it == 0, (r1[:3] + [d[1]], r1[3:] + [d[2]]))
    g("s_waitcnt lgkmcnt(0)")
    mfmas(1, False)
    g("s_barrier")
    stamp(g, 6)
    g("s_mul_i32 s17, s15, 9216")
    g("s_lshl_b32 s18, s16, 6")
    g("s_add_u32 s17, s17, s18")
    g("v_mul_u32_u24 v16, 144, v8")
    g("v_lshl_add_u32 v16, v9, 3, v16")
    g("v_add_u32 v16, s17, v16")
    g.nop(10)
    k = 0
    for mt in range(2):
        for a in range(4):
            acc = ACC + 16 * mt + 4 * a
            t = FR + 2 * (k % 8)
            k += 1
            g(f"v_cvt_pk_bf16_f32 v{t}, v{acc}, v{acc+1}")
            g(f"v_cvt_pk_bf16_f32 v{t+1}, v{acc+2}, v{acc+3}")
            g(f"ds_write_b64 v16, {vr(t,2)} offset:{4608*mt+16*a}")
    make_srd(g, 36, 6, 0, 2 * SZ_26)
    g("v_lshrrev_b32 v17, 3, v0")
    g("v_and_b32 v18, 7, v0")
    g("v_mul_u32_u24 v19, 144, v17")
    g("v_lshl_add_u32 v19, v18, 4, v19")
    g("s_movk_i32 s13, 2560")
    g("v_mul_lo_u32 v20, v17, s13")
    g("v_lshl_add_u32 v20, v18, 4, v20")
    g("s_mul_i32 s40, s10, 327680")
    g("s_lshl_b32 s41, s11, 7")
    g("s_add_u32 s40, s40, s41")
    g("s_add_u32 s40, s40, 1280")
    g("s_waitcnt lgkmcnt(0)")
    g("s_barrier")
    for it in range(4):
        g(f"ds_read_b128 {vr(ACC+4*it,4)}, v19 offset:{4608*it}")
    for it in range(4):
        g(f"s_waitcnt lgkmcnt({3-it})")
        g(f"buffer_store_dwordx4 {vr(ACC+4*it,4)}, v20, s[36:39], s40 offen {NTO}")
        g(f"s_add_u32 s40, s40, {32*2560}")
    stamp(g, 7)
    if STAMPS: g("s_waitcnt vmcnt(0)")
    stamp_flush(g, 2, 8, 8)
    dbg_end(g, 2)
    g("s_endpgm")


def gen_k3(g):
    name = "k3_kernel"
    kernel_begin(g, name)
    la3 = g.newlabel("a3")
    lend = g.newlabel("end")
    g("s_cmp_ge_u32 s2, 160")
    g(f"s_cbranch_scc1 {la3}")
    gen_gemm2(g)
    g.label(la3)
    g("s_cmp_ge_u32 s2, 240")
    g(f"s_cbranch_scc1 {lend}")
    g("v_lshrrev_b32 v1, 6, v0")
    g("s_sub_u32 s3, s2, 160")
    g("s_lshl_b32 s3, s3, 2")
    g("v_readfirstlane_b32 s19, v1")
    g("s_nop 3")
    g("s_add_u32 s3, s3, s19")
    gen_a3(g, "s3")
    g.label(lend)
    g("s_endpgm")
    return name


def main(path):
    g = G()
    k2_lds = AT_LDS
    g.raw(f"; @launch kernel=k1_kernel grid=({N_G1_WG+N_AUX_WG},1,1) block=(256,1,1) lds={G1_NS*G1_STAGE}")
    g.raw(f"; @launch kernel=k2_kernel grid=({N_CONV_WG+512},1,1) block=(256,1,1) lds={k2_lds}")
    g.raw(f"; @launch kernel=k3_kernel grid=(240,1,1) block=(256,1,1) lds={G2_NS*G2_STAGE}")
    g.raw('.amdgcn_target "amdgcn-amd-amdhsa--gfx950"')
    g.raw(".text")
    gen_k1(g)
    gen_k2(g)
    gen_k3(g)
    g.raw('.section .rodata,"a"')
    g.raw(".p2align 6")
    kernel_desc(g, "k1_kernel", 256)
    g.raw(".p2align 6")
    kernel_desc(g, "k2_kernel", 128)
    g.raw(".p2align 6")
    kernel_desc(g, "k3_kernel", 128)
    open(path, "w").write("\n".join(g.lines) + "\n")


if __name__ == "__main__":
    if "--stamps" in sys.argv:
        STAMPS = True
        sys.argv.remove("--stamps")
    for a in list(sys.argv[1:]):
        if "=" in a:
            k_, v_ = a.split("=")
            globals()[k_] = eval(v_)
            sys.argv.remove(a)
    main(sys.argv[1] if len(sys.argv) > 1 else f"cdna_kernels/{NAME}.s")
```

```python
import sys

NAME = "concat_heads__ssm_conv_h3__sliding_block__prompt"

WS_XR = 0x000000
WS_QK4 = 0x280000
WS_VG = 0x780000
WS_O4 = 0xA00000
WS_Y2T = 0xC80000
SZ_26 = 2621440
SZ_QK4 = 5242880

KA = dict(q=0, k=8, v=16, shift=24, ssmk=32, ssmD=40, x=48, wqkv=56, wo=64, out=72, dbg=80, ws=88)


class G:
    def __init__(self):
        self.lines = []
        self.uid = 0

    def __call__(self, s):
        self.lines.append("    " + s)

    def label(self, name):
        self.lines.append(name + ":")

    def raw(self, s):
        self.lines.append(s)

    def newlabel(self, p="L"):
        self.uid += 1
        return f".{p}_{self.uid}"

    def nop(self, n):
        while n > 0:
            k = min(n, 16)
            self(f"s_nop {k-1}")
            n -= k


def vr(a, n=1):
    return f"v{a}" if n == 1 else f"v[{a}:{a+n-1}]"


def sr(a, n=1):
    return f"s{a}" if n == 1 else f"s[{a}:{a+n-1}]"


def make_srd(g, d, ptr, off, size):
    if off:
        g(f"s_add_u32 s{d}, s{ptr}, {off:#x}")
        g(f"s_addc_u32 s{d+1}, s{ptr+1}, 0")
    else:
        g(f"s_mov_b32 s{d}, s{ptr}")
        g(f"s_mov_b32 s{d+1}, s{ptr+1}")
    g(f"s_mov_b32 s{d+2}, {size:#x}")
    g(f"s_mov_b32 s{d+3}, 0x00020000")


STAMPS = False
FINE = False
STF = 'sc1'
NTI = ''
NTW = ''
NTO = 'sc1'
NTM = ''
NTH = ''
WS_ST = 0x1000000


def stamp(g, idx):
    if not STAMPS:
        return
    g("s_memrealtime s[98:99]")
    g("s_waitcnt lgkmcnt(0)")
    g(f"s_mov_b32 s{80+idx}, s98")


def stamp_flush(g, kidx, n, wsptr):
    if not STAMPS:
        return
    stamp(g, n)
    n += 1
    g("s_mov_b64 exec, -1")
    g(f"s_add_u32 s96, s{wsptr}, {WS_ST + kidx*0x40000:#x}")
    g(f"s_addc_u32 s97, s{wsptr+1}, 0")
    g("s_mov_b32 s98, 0x40000")
    g("s_mov_b32 s99, 0x00020000")
    g("v_cmp_eq_u32 vcc, 0, v0")
    g("s_and_saveexec_b64 s[94:95], vcc")
    g("s_lshl_b32 s94, s2, 6")
    g("v_mov_b32 v1, s94")
    for i in range(n):
        g(f"v_mov_b32 v2, s{80+i}")
        g(f"buffer_store_dword v2, v1, s[96:99], 0 offen offset:{4*i}")


DBGT = False


def kernel_begin(g, name):
    g.raw(f".globl {name}")
    g.raw(".p2align 8")
    g.raw(f".type {name},@function")
    g.label(name)
    if DBGT:
        g("s_memrealtime s[72:73]")
        g("s_memtime s[74:75]")


def dbg_end(g, kidx):
    if not DBGT:
        return
    l = g.newlabel("dbg")
    g("s_cmp_lg_u32 s2, 0")
    g(f"s_cbranch_scc1 {l}")
    g("s_waitcnt vmcnt(0)")
    g("s_memrealtime s[76:77]")
    g("s_memtime s[78:79]")
    g(f"s_load_dwordx2 s[84:85], s[0:1], {KA['dbg']}")
    g("s_waitcnt lgkmcnt(0)")
    g("s_mov_b32 s86, 256")
    g("s_mov_b32 s87, 0x00020000")
    g("s_mov_b64 exec, 1")
    g("v_mov_b32 v1, 0")
    for i, v in enumerate([str(100 + kidx), "s72", "s76", "s74", "s78"]):
        g(f"v_mov_b32 v2, {v}")
        g(f"buffer_store_dword v2, v1, s[84:87], 0 offen offset:{4*i}")
    g.label(l)


def kernel_desc(g, name, vgpr, sgpr=102):
    acc = (vgpr + 3) // 4 * 4
    g.raw(f".amdhsa_kernel {name}")
    g.raw(f"  .amdhsa_next_free_vgpr {vgpr}")
    g.raw(f"  .amdhsa_next_free_sgpr {sgpr}")
    g.raw(f"  .amdhsa_accum_offset {acc}")
    g.raw("  .amdhsa_group_segment_fixed_size 0")
    g.raw("  .amdhsa_kernarg_size 96")
    g.raw("  .amdhsa_user_sgpr_count 2")
    g.raw("  .amdhsa_user_sgpr_kernarg_segment_ptr 1")
    g.raw("  .amdhsa_system_sgpr_workgroup_id_x 1")
    g.raw("  .amdhsa_float_denorm_mode_32 3")
    g.raw(".end_amdhsa_kernel")


A1_RL = 4
N_A1_WG = 2048 // (8 * A1_RL) * 10 // 4


def gen_a1_multi(g, s_wv, nwv):
    RL = A1_RL
    NR = RL + 3
    NU = (640 + nwv - 1) // nwv
    g(f"s_load_dwordx4 s[4:7], s[0:1], {KA['k']}")
    g(f"s_load_dwordx2 s[8:9], s[0:1], {KA['shift']}")
    g(f"s_load_dwordx2 s[10:11], s[0:1], {KA['ws']}")
    g("v_and_b32 v1, 63, v0")
    g("v_and_b32 v2, 7, v1")
    g("v_lshrrev_b32 v3, 3, v1")
    g(f"v_mul_u32_u24 v3, {RL}, v3")
    g("v_mov_b32 v9, 0x80000000")
    g("s_waitcnt lgkmcnt(0)")
    make_srd(g, 20, 4, 0, SZ_26)
    make_srd(g, 24, 6, 0, SZ_26)
    make_srd(g, 28, 8, 0, 5120)
    make_srd(g, 32, 10, WS_XR, SZ_26)
    RAW = 64
    PER = 4 * NR + 4 * RL + 16
    for u in range(NU):
        g(f"s_add_u32 s12, {s_wv}, {u*nwv}")
        g("s_mul_hi_u32 s13, s12, 0x1999999a")
        g("s_mul_i32 s14, s13, 10")
        g("s_sub_u32 s14, s12, s14")
        g(f"s_mul_i32 s13, s13, {8*RL}")
        g("v_add_u32 v4, s13, v3")
        g("s_lshl_b32 s15, s14, 6")
        g("v_lshl_add_u32 v5, v2, 3, s15")
        g("v_mul_u32_u24 v6, 1280, v4")
        g("v_lshl_add_u32 v6, v5, 1, v6")
        g("v_subrev_u32 v8, 3840, v6")
        g("v_cmp_eq_u32 vcc, 0, v4")
        g("v_lshlrev_b32 v7, 3, v5")
        g(f"v_lshlrev_b32 v{10+u}, 12, v5")
        g("v_cndmask_b32 v8, v8, v9, vcc")
        g(f"v_sub_u32 v4, {2048-RL}, v4")
        g(f"v_lshl_add_u32 v{10+u}, v4, 1, v{10+u}")
        KR = RAW + PER * u
        VR = KR + 4 * NR
        WR = VR + 4 * RL
        for r in range(3):
            g(f"buffer_load_dwordx4 {vr(KR+4*r,4)}, v8, s[20:23], 0 offen offset:{1280*r} {NTI}")
        for r in range(RL):
            g(f"buffer_load_dwordx4 {vr(KR+12+4*r,4)}, v6, s[20:23], 0 offen offset:{1280*r} {NTI}")
        for j in range(4):
            g(f"buffer_load_dwordx4 {vr(WR+4*j,4)}, v7, s[28:31], 0 offen offset:{16*j}")
        for r in range(RL):
            g(f"buffer_load_dwordx4 {vr(VR+4*r,4)}, v6, s[24:27], 0 offen offset:{1280*r} {NTI}")
    g("s_mov_b32 s17, 0xffff0000")
    NL = NR + 4 + RL
    KF = 16
    WF = KF + 12
    T = WF + 4
    OUT = T + 12
    PK = OUT + 8
    NP = RL // 2
    ldone = g.newlabel("a1done")
    for u in range(NU):
        if (u + 1) * nwv > 640:
            g(f"s_add_u32 s12, {s_wv}, {u*nwv}")
            g("s_cmp_ge_u32 s12, 640")
            g(f"s_cbranch_scc1 {ldone}")
        g(f"s_waitcnt vmcnt({NL*(NU-1-u) + 8*u})")
        KR = RAW + PER * u
        VR = KR + 4 * NR
        WR = VR + 4 * RL
        for ch in range(8):
            j, hi = ch // 2, ch % 2
            for r in range(NR):
                src = KR + 4 * r + j
                if hi:
                    g(f"v_and_b32 v{KF+r}, s17, v{src}")
                else:
                    g(f"v_lshlrev_b32 v{KF+r}, 16, v{src}")
            g(f"v_lshlrev_b32 v{WF+0}, 16, v{WR+2*ch}")
            g(f"v_and_b32 v{WF+1}, s17, v{WR+2*ch}")
            g(f"v_lshlrev_b32 v{WF+2}, 16, v{WR+2*ch+1}")
            g(f"v_and_b32 v{WF+3}, s17, v{WR+2*ch+1}")
            for s0 in range(0, RL, 2):
                for uu in range(2):
                    sx = s0 + uu
                    t = T + 6 * uu
                    g(f"v_mul_f32 v{t}, v{KF+sx}, v{WF+3}")
                    g(f"v_mul_f32 v{t+1}, v{KF+sx+1}, v{WF+2}")
                    g(f"v_mul_f32 v{t+2}, v{KF+sx+2}, v{WF+1}")
                    g(f"v_mul_f32 v{t+3}, v{KF+sx+3}, v{WF+0}")
                    src = VR + 4 * sx + j
                    if hi:
                        g(f"v_and_b32 v{t+4}, s17, v{src}")
                    else:
                        g(f"v_lshlrev_b32 v{t+4}, 16, v{src}")
                for uu in range(2):
                    t = T + 6 * uu
                    for q in range(4):
                        g(f"v_cvt_pk_bf16_f32 v{t+q}, 0, v{t+q}")
                for q in range(1, 4):
                    for uu in range(2):
                        t = T + 6 * uu
                        g(f"v_add_f32 v{t}, v{t}, v{t+q}")
                    for uu in range(2):
                        t = T + 6 * uu
                        g(f"v_cvt_pk_bf16_f32 v{t}, 0, v{t}")
                for uu in range(2):
                    t = T + 6 * uu
                    g(f"v_mul_f32 v{OUT+s0+uu}, v{t}, v{t+4}")
            pk = PK + NP * (ch % 4)
            for e in range(NP):
                g(f"v_cvt_pk_bf16_f32 v{pk+e}, v{OUT+RL-1-2*e}, v{OUT+RL-2-2*e}")
            g(f"s_mov_b32 s18, {4096*ch}")
            g(f"buffer_store_dwordx{NP} {vr(pk,NP)}, v{10+u}, s[32:35], s18 offen {STF}")
    g.label(ldone)
    return RAW + PER * NU


def gen_a3(g, s_unit):
    stamp(g, 0)
    g(f"s_load_dwordx2 s[4:5], s[0:1], {KA['q']}")
    g(f"s_load_dwordx2 s[6:7], s[0:1], {KA['out']}")
    g(f"s_load_dwordx2 s[10:11], s[0:1], {KA['ws']}")
    g(f"s_mul_hi_u32 s12, {s_unit}, 0x1999999a")
    g(f"s_mul_i32 s13, s12, 10")
    g(f"s_sub_u32 s13, {s_unit}, s13")
    g("v_and_b32 v1, 63, v0")
    g("v_and_b32 v2, 7, v1")
    g("v_lshrrev_b32 v3, 3, v1")
    g("s_lshl_b32 s14, s12, 6")
    g("v_lshl_add_u32 v4, v3, 3, s14")
    g("s_lshl_b32 s15, s13, 6")
    g("v_lshl_add_u32 v5, v2, 3, s15")
    g("s_movk_i32 s16, 1280")
    g("v_mul_lo_u32 v6, v4, s16")
    g("v_lshl_add_u32 v7, v5, 1, v6")
    g("v_add_u32 v8, 5120, v7")
    g("v_lshlrev_b32 v6, 1, v6")
    g("v_lshl_add_u32 v9, v5, 1, v6")
    g("v_lshlrev_b32 v10, 12, v5")
    g("v_lshl_add_u32 v10, v4, 1, v10")
    g("s_waitcnt lgkmcnt(0)")
    stamp(g, 1)
    make_srd(g, 20, 4, 0, SZ_26)
    make_srd(g, 24, 6, 0, 2 * SZ_26)
    make_srd(g, 28, 10, WS_Y2T, SZ_26)
    QR = 16
    YR = 48
    for r in range(8):
        vo = "v7" if r < 4 else "v8"
        g(f"buffer_load_dwordx4 {vr(QR+4*r,4)}, {vo}, s[20:23], 0 offen offset:{1280*(r%4)} {NTI}")
    for ch in range(8):
        g(f"s_mov_b32 s18, {4096*ch}")
        g(f"buffer_load_dwordx4 {vr(YR+4*ch,4)}, v10, s[28:31], s18 offen {NTM}")
    g("s_mov_b32 s17, 0xffff0000")
    g("s_waitcnt vmcnt(0)")
    stamp(g, 2)
    T = 80
    PK = 96
    for s in range(8):
        for j in range(4):
            t = T + 4 * (j % 2)
            g(f"v_lshlrev_b32 v{t}, 16, v{QR+4*s+j}")
            g(f"v_and_b32 v{t+1}, s17, v{QR+4*s+j}")
            for u in range(2):
                src = YR + 4 * (2 * j + u) + s // 2
                if s % 2:
                    g(f"v_and_b32 v{t+2+u}, s17, v{src}")
                else:
                    g(f"v_lshlrev_b32 v{t+2+u}, 16, v{src}")
            g(f"v_mul_f32 v{t}, v{t}, v{t+2}")
            g(f"v_mul_f32 v{t+1}, v{t+1}, v{t+3}")
            g(f"v_cvt_pk_bf16_f32 v{PK+4*s+j}, v{t}, v{t+1}")
    for s in range(8):
        g(f"s_mov_b32 s18, {2560*s}")
        g(f"buffer_store_dwordx4 {vr(PK+4*s,4)}, v9, s[24:27], s18 offen {NTO}")
    stamp(g, 3)
    if STAMPS: g("s_waitcnt vmcnt(0)")
    stamp_flush(g, 2, 4, 10)
    g("s_endpgm")


G1_NS = 3
G1_STAGE = 16384 + 24576
N_G1_WG = 160
N_AUX_WG = 96


def gen_gemm1(g):
    NS = G1_NS
    NIT = 10
    NPC = 10
    stamp(g, 0)
    g(f"s_load_dwordx4 s[4:7], s[0:1], {KA['x']}")
    g(f"s_load_dwordx2 s[8:9], s[0:1], {KA['ws']}")
    g("s_and_b32 s12, s2, 3")
    g("s_bfe_u32 s13, s2, 0x10002")
    g("s_lshr_b32 s14, s2, 3")
    g("s_lshl_b32 s10, s12, 2")
    g("s_and_b32 s15, s14, 3")
    g("s_add_u32 s10, s10, s15")
    g("s_mul_i32 s11, s13, 5")
    g("s_lshr_b32 s15, s14, 2")
    g("s_add_u32 s11, s11, s15")
    g("v_lshrrev_b32 v1, 6, v0")
    g("v_and_b32 v2, 63, v0")
    g("s_nop 0")
    g("v_readfirstlane_b32 s12, v1")
    g("v_lshrrev_b32 v3, 3, v2")
    g("v_mul_u32_u24 v3, 1280, v3")
    g("v_lshrrev_b32 v4, 4, v2")
    g("v_and_b32 v5, 7, v2")
    g("v_xor_b32 v6, v5, v4")
    g("v_xor_b32 v7, 4, v6")
    g("s_mul_i32 s14, s12, 40960")
    g("v_add_u32 v3, s14, v3")
    g("v_lshl_add_u32 v6, v6, 4, v3")
    g("v_lshl_add_u32 v7, v7, 4, v3")
    g("s_mul_i32 s14, s12, 384")
    VB = [16, 17, 18, 19, 20, 21]
    for i in range(6):
        g(f"v_add_u32 v8, s14, v2")
        if i:
            g(f"v_add_u32 v8, {64*i}, v8")
        g("v_mul_u32_u24 v9, 0xaab, v8")
        g("v_lshrrev_b32 v9, 16, v9")
        g("v_mul_u32_u24 v10, 24, v9")
        g("v_sub_u32 v10, v8, v10")
        g("v_bfe_u32 v11, v9, 1, 1")
        g("v_lshlrev_b32 v11, 2, v11")
        g("v_xor_b32 v10, v10, v11")
        g("v_mul_u32_u24 v9, 3840, v9")
        g(f"v_lshl_add_u32 v{VB[i]}, v10, 4, v9")
    B0 = 22
    g("s_waitcnt lgkmcnt(0)")
    stamp(g, 1)
    make_srd(g, 20, 4, 0, SZ_26)
    make_srd(g, 24, 6, 0, 640 * 3840)
    g("s_mul_i32 s28, s10, 163840")
    g("s_mul_i32 s30, s11, 384")
    g("s_lshl_b32 s32, s12, 12")
    g("s_mul_i32 s33, s12, 6144")
    g("s_and_b32 s34, s10, 3")
    g("s_mul_i32 s34, s34, 5")
    g("s_lshr_b32 s34, s34, 1")
    g("s_mul_i32 s35, s11, 3")
    g("s_add_u32 s34, s34, s35")
    g("s_lshr_b32 s35, s10, 2")
    g("s_add_u32 s34, s34, s35")
    g("s_mul_hi_u32 s35, s34, 0x1999999a")
    g("s_mul_i32 s35, s35, 10")
    g("s_sub_u32 s34, s34, s35")
    g("s_lshl_b32 s35, s34, 7")
    g("s_add_u32 s28, s28, s35")
    g("s_mul_i32 s35, s34, 245760")
    g("s_add_u32 s30, s30, s35")
    g("s_mov_b32 s37, 245760")
    g("s_movk_i32 s38, 128")

    def dma_piece(it, j):
        base = (it % NS) * G1_STAGE
        if j < 4:
            g(f"s_add_u32 m0, s32, {base + 1024*j}")
            if j:
                g(f"s_add_u32 s29, s28, {10240*j}")
            else:
                g("s_nop 0")
            g(f"buffer_load_dwordx4 v{6 + (j & 1)}, s[20:23], s{29 if j else 28} offen {NTW} lds")
        else:
            i = j - 4
            g(f"s_add_u32 m0, s33, {base + 16384 + 1024*i}")
            g("s_nop 0")
            g(f"buffer_load_dwordx4 v{VB[i]}, s[24:27], s30 offen {NTW} lds")
        if j == NPC - 1:
            g("s_add_u32 s34, s34, 1")
            g("s_cmp_eq_u32 s34, 10")
            g(f"s_cselect_b32 s35, {(128-1280) & 0xffffffff:#x}, s38")
            g(f"s_cselect_b32 s36, {(245760-10*245760) & 0xffffffff:#x}, s37")
            g("s_cselect_b32 s34, 0, s34")
            g("s_add_u32 s28, s28, s35")
            g("s_add_u32 s30, s30, s36")

    for it in range(NS - 1):
        for j in range(NPC):
            dma_piece(it, j)
    g("s_lshr_b32 s15, s12, 1")
    g("s_and_b32 s16, s12, 1")
    g("v_and_b32 v8, 31, v2")
    g("v_lshrrev_b32 v9, 5, v2")
    g("v_bfe_u32 v10, v8, 1, 3")
    g("v_xor_b32 v10, v9, v10")
    g("s_lshl_b32 s17, s15, 13")
    g("v_lshl_add_u32 v11, v8, 7, s17")
    B0 = 22
    for ks in range(4):
        g(f"v_xor_b32 v12, {2*ks}, v10")
        g(f"v_lshl_add_u32 v{B0+ks}, v12, 4, v11")
    g("v_bfe_u32 v13, v2, 2, 2")
    g("v_lshl_add_u32 v14, v9, 3, v13")
    g("v_mul_u32_u24 v14, 384, v14")
    g("v_and_b32 v15, 1, v4")
    g("v_lshl_add_u32 v14, v15, 5, v14")
    g("v_and_b32 v15, 3, v2")
    g("v_lshl_add_u32 v14, v15, 3, v14")
    g("v_add_u32 v14, 16384, v14")
    g("v_lshrrev_b32 v13, 1, v13")
    g("s_mul_i32 s17, s16, 3")
    for nt in range(3):
        g(f"s_add_u32 s18, s17, {nt}")
        g("v_xor_b32 v15, s18, v13")
        g(f"v_lshl_add_u32 v{B0+4+nt}, v15, 6, v14")
    for st in range(1, NS):
        for i in range(7):
            g(f"v_add_u32 v{B0+7*st+i}, {st*G1_STAGE}, v{B0+i}")
    assert B0 + 7 * NS <= 52

    ACC = 52
    FR = 148

    def read_list(it, ks, b):
        st = it % NS
        L = []
        for nt in range(3):
            for half in range(2):
                L.append(f"ds_read_b64_tr_b16 {vr(FR+20*b+8+4*nt+2*half,2)}, v{B0+7*st+4+nt} offset:{6144*ks+1536*half}")
            if nt < 2:
                L.append(f"ds_read_b128 {vr(FR+20*b+4*nt,4)}, v{B0+7*st+ks} offset:{4096*nt}")
        return L

    def mfmas(b, orient, first, hooks, rl=()):
        i = 0
        rl = list(rl)
        for nt in range(3):
            for mt in range(2):
                if i > 0:
                    for _ in range(2):
                        if rl:
                            g(rl.pop(0))
                if i in hooks:
                    hooks[i]()
                i += 1
                acc = vr(ACC + 16 * (3 * mt + nt), 16)
                xf = vr(FR + 20 * b + 4 * mt, 4)
                wf = vr(FR + 20 * b + 8 + 4 * nt, 4)
                c = "0" if first else acc
                if orient[nt] == "q":
                    g(f"v_mfma_f32_32x32x16_bf16 {acc}, {wf}, {xf}, {c}")
                else:
                    g(f"v_mfma_f32_32x32x16_bf16 {acc}, {xf}, {wf}, {c}")

    lv = g.newlabel("g1v")
    lm = g.newlabel("g1m")
    g("s_mul_i32 s39, s11, 6")
    g("s_add_u32 s39, s39, s17")
    g("s_cmp_ge_u32 s39, 40")
    g(f"s_cbranch_scc1 {lv}")
    g("s_cmp_eq_u32 s39, 39")
    g(f"s_cbranch_scc1 {lm}")
    for orient in ("qqq", "vvv", "qvv"):
        if orient == "vvv":
            g.label(lv)
        if orient == "qvv":
            g.label(lm)
        for it in range(NIT):
            n = NPC * (min(it + NS - 2, NIT - 1) - it)
            g(f"s_waitcnt vmcnt({n}) lgkmcnt(0)")
            g("s_barrier")
            if it in (0, 3, 6, 9):
                stamp(g, 2 + it // 3)
            pf = it + NS - 1 < NIT
            nx = it + NS - 1
            pieces = list(range(NPC)) if pf else []

            def hk(slots):
                h = {}
                for sl in slots:
                    if pieces:
                        j = pieces.pop(0)
                        h[sl] = (lambda j=j: dma_piece(nx, j))
                return h
            for ks in range(4):
                b = ks % 2
                rl = read_list(it, ks, b)
                if ks > 0 or it > 0:
                    if ks > 0:
                        g("s_waitcnt lgkmcnt(0)")
                    mfmas(1 - b, orient, it == 0 and ks == 1, hk([1, 3, 5] if ks < 2 else [2, 5]), rl)
                else:
                    for r_ in rl:
                        g(r_)
                    for j in range(3):
                        if pieces:
                            dma_piece(nx, pieces.pop(0))
        g("s_waitcnt lgkmcnt(0)")
        mfmas(1, orient, False, {})
        g.nop(16)
        stamp(g, 6)
        if "q" in orient:
            make_srd(g, 40, 8, WS_QK4, SZ_QK4)
            g("v_lshlrev_b32 v21, 14, v9")
            g("v_lshl_add_u32 v21, v8, 3, v21")
            g("s_lshl_b32 s48, s15, 9")
            g("v_add_u32 v21, s48, v21")
            g("s_lshl_b32 s48, s39, 17")
            g("s_lshl_b32 s49, s10, 10")
            g("s_add_u32 s48, s48, s49")
        if "v" in orient:
            make_srd(g, 44, 8, WS_VG, SZ_26)
            g("v_lshlrev_b32 v20, 5, v8")
            g("v_lshl_add_u32 v20, v9, 4, v20")
            g("s_mul_i32 s50, s15, 81920")
            g("v_add_u32 v20, s50, v20")
            g("s_mul_i32 s50, s10, 163840")
            g("s_lshl_b32 s51, s39, 10")
            g("s_add_u32 s50, s50, s51")
            g(f"s_sub_u32 s50, s50, {40*1024}")
        k = 0
        for nt in range(3):
            if orient[nt] == "q":
                for a in range(4):
                    g(f"s_add_u32 s49, s48, {(8*nt+2*a)*16384}")
                    for mt in range(2):
                        acc = ACC + 16 * (3 * mt + nt) + 4 * a
                        t = FR + 4 * (k % 8)
                        k += 1
                        g(f"v_cvt_pk_bf16_f32 v{t}, v{acc}, v{acc+1}")
                        g(f"v_cvt_pk_bf16_f32 v{t+1}, v{acc+2}, v{acc+3}")
                        g(f"buffer_store_dwordx2 {vr(t,2)}, v21, s[40:43], s49 offen offset:{256*mt} {STF}")
            else:
                for mt in range(2):
                    for ap in range(2):
                        g(f"s_add_u32 s51, s50, {(2*mt+ap)*20480 + nt*1024}")
                        acc = ACC + 16 * (3 * mt + nt) + 8 * ap
                        t = FR + 4 * (k % 8)
                        k += 1
                        for e in range(4):
                            g(f"v_cvt_pk_bf16_f32 v{t+e}, v{acc+2*e}, v{acc+2*e+1}")
                        g(f"buffer_store_dwordx4 {vr(t,4)}, v20, s[44:47], s51 offen {STF}")
        stamp(g, 7)
        if STAMPS: g("s_waitcnt vmcnt(0)")
        stamp_flush(g, 0, 8, 8)
        dbg_end(g, 0)
        g("s_endpgm")


def gen_k1(g):
    name = "k1_kernel"
    kernel_begin(g, name)
    lend = g.newlabel("end")
    lpf = g.newlabel("aux")
    g(f"s_cmp_ge_u32 s2, {N_G1_WG}")
    g(f"s_cbranch_scc1 {lpf}")
    gen_gemm1(g)
    g.label(lpf)
    g(f"s_cmp_ge_u32 s2, {N_G1_WG+N_AUX_WG}")
    g(f"s_cbranch_scc1 {lend}")
    stamp(g, 0)
    g("v_lshrrev_b32 v1, 6, v0")
    g(f"s_sub_u32 s3, s2, {N_G1_WG}")
    g("s_lshl_b32 s3, s3, 2")
    g("v_readfirstlane_b32 s19, v1")
    g("s_nop 3")
    g("s_add_u32 s3, s3, s19")
    gen_a1_multi(g, "s3", N_AUX_WG * 4)
    stamp(g, 1)
    if PF_LIST:
        gen_prefetch(g, N_G1_WG, N_AUX_WG, PF_LIST)
    if STAMPS:
        g("s_waitcnt vmcnt(0)")
        g(f"s_load_dwordx2 s[8:9], s[0:1], {KA['ws']}")
        g("s_waitcnt lgkmcnt(0)")
    stamp_flush(g, 0, 2, 8)
    g.label(lend)
    g("s_endpgm")
    return name


N_PF_WG = 0
PF_LIST = ['ssmk', 'wo', 'q']
PF_SIZE = dict(k=SZ_26, v=SZ_26, ssmk=SZ_26, wo=640 * 1280, q=SZ_26)


def gen_prefetch(g, id0, nwg, names):
    for i, nm in enumerate(names):
        g(f"s_load_dwordx2 s[{4+2*i}:{5+2*i}], s[0:1], {KA[nm]}")
    g(f"s_sub_u32 s3, s2, {id0}")
    g("v_lshlrev_b32 v1, 4, v0")
    g("s_lshl_b32 s3, s3, 12")
    g("v_add_u32 v1, s3, v1")
    g("s_waitcnt lgkmcnt(0)")
    step = nwg * 4096
    for i, nm in enumerate(names):
        make_srd(g, 20, 4 + 2 * i, 0, PF_SIZE[nm])
        n = (PF_SIZE[nm] + step - 1) // step
        lp = g.newlabel("pfl")
        g("s_mov_b32 s24, 0")
        g.label(lp)
        for u in range(4):
            g(f"buffer_load_dwordx4 v[{4+4*u}:{7+4*u}], v1, s[20:23], s24 offen")
            g(f"s_add_u32 s24, s24, {step}")
        g("s_waitcnt vmcnt(24)")
        g(f"s_cmp_lt_u32 s24, {n*step}")
        g(f"s_cbranch_scc1 {lp}")


CV_COPY = 4160
CV_X = 4 * CV_COPY
N_CONV_WG = 640
CONV_PRIO = 2
ATT_PRIO = 0
ATT_PRIO2 = None


def gen_conv(g):
    stamp(g, 0)
    if CONV_PRIO:
        g(f"s_setprio {CONV_PRIO}")
    g(f"s_load_dwordx4 s[4:7], s[0:1], {KA['ssmk']}")
    g(f"s_load_dwordx2 s[8:9], s[0:1], {KA['ws']}")
    g("v_lshrrev_b32 v1, 6, v0")
    g("v_and_b32 v2, 63, v0")
    g("s_nop 0")
    g("v_readfirstlane_b32 s12, v1")
    g("s_lshl_b32 s16, s3, 12")
    g("v_lshlrev_b32 v4, 4, v0")
    g("s_waitcnt lgkmcnt(0)")
    stamp(g, 1)
    g("s_lshl_b32 s18, s3, 1")
    g("s_and_b32 s18, s18, 0xfffffffc")
    g("s_load_dword s19, s[6:7], s18")
    make_srd(g, 20, 4, 0, SZ_26)
    make_srd(g, 24, 8, WS_XR, SZ_26)
    make_srd(g, 28, 8, WS_Y2T, SZ_26)
    H = 8
    X = 20
    for j in range(3):
        g(f"buffer_load_dwordx4 {vr(H+4*j,4)}, v4, s[20:23], s16 offen offset:{4*j} {NTH}")
    g(f"buffer_load_dwordx4 {vr(X,4)}, v4, s[24:27], s16 offen {NTM}")
    for i in range(4):
        g(f"v_mov_b32 v{44+i}, 0")
    g("v_cmp_gt_u32 vcc, 30, v0")
    g("s_and_saveexec_b64 s[32:33], vcc")
    g(f"ds_write_b128 v4, v[44:47] offset:{CV_X+4096}")
    g("s_mov_b64 exec, s[32:33]")
    g("v_and_b32 v6, 15, v2")
    g("v_lshrrev_b32 v7, 4, v2")
    g("v_add_u32 v32, 1, v6")
    g("v_and_b32 v33, 3, v32")
    g(f"v_mul_u32_u24 v33, {CV_COPY}, v33")
    g("v_lshrrev_b32 v32, 2, v32")
    g("v_lshl_add_u32 v33, v32, 3, v33")
    g("v_lshl_add_u32 v33, v7, 4, v33")
    g("s_lshl_b32 s35, s12, 7")
    g("v_add_u32 v3, s35, v33")
    g("v_lshlrev_b32 v32, 5, v6")
    g(f"v_sub_u32 v32, {CV_X+4064-3584}, v32")
    g("v_lshl_add_u32 v32, v7, 4, v32")
    g("v_add_u32 v5, s35, v32")
    g("s_waitcnt vmcnt(0)")
    stamp(g, 2)
    T = 24
    A, B, C = H, H + 4, H + 8
    for j in range(4):
        g(f"v_alignbyte_b32 v{T+j}, v{B+j}, v{A+j}, 2")
    for j in range(4):
        g(f"v_alignbyte_b32 v{T+4+j}, v{C+j}, v{B+j}, 2")
    g(f"ds_write_b128 v4, {vr(A,4)} offset:{0*CV_COPY+32}")
    g(f"ds_write_b128 v4, {vr(T,4)} offset:{1*CV_COPY+32}")
    g(f"ds_write_b128 v4, {vr(B,4)} offset:{2*CV_COPY+32}")
    g(f"ds_write_b128 v4, {vr(T+4,4)} offset:{3*CV_COPY+32}")
    g(f"ds_write_b128 v4, {vr(X,4)} offset:{CV_X}")
    g("v_cmp_eq_u32 vcc, 0, v0")
    g("s_and_saveexec_b64 s[32:33], vcc")
    g(f"v_lshlrev_b32 v34, 16, v{A}")
    g(f"v_alignbyte_b32 v35, v{A+1}, v{A}, 2")
    for sg in range(4):
        g(f"ds_write_b128 v4, v[44:47] offset:{sg*CV_COPY}")
    g(f"ds_write_b128 v4, v[44:47] offset:{0*CV_COPY+16}")
    g("v_mov_b32 v36, 0")
    g("v_mov_b32 v37, 0")
    g("v_mov_b32 v38, 0")
    g("v_mov_b32 v39, v34")
    g(f"ds_write_b128 v4, v[36:39] offset:{1*CV_COPY+16}")
    g("v_mov_b32 v40, 0")
    g("v_mov_b32 v41, 0")
    g("v_mov_b32 v42, 0")
    g(f"v_mov_b32 v43, v{A}")
    g(f"ds_write_b128 v4, v[40:43] offset:{2*CV_COPY+16}")
    g("v_mov_b32 v48, 0")
    g("v_mov_b32 v49, 0")
    g("v_mov_b32 v50, v34")
    g("v_mov_b32 v51, v35")
    g(f"ds_write_b128 v4, v[48:51] offset:{3*CV_COPY+16}")
    g("s_mov_b64 exec, s[32:33]")
    g("s_waitcnt lgkmcnt(0)")
    g("s_barrier")
    stamp(g, 3)
    ACC = 16
    FR = 48

    def rdA(rp, mu):
        g(f"ds_read_b64 {vr(FR+4*mu,2)}, v3 offset:{64*(8*mu+rp)}")
        g(f"ds_read_b64 {vr(FR+4*mu+2,2)}, v3 offset:{64*(8*mu+rp)+8}")

    def rdB(rp, tau):
        g(f"ds_read_b128 {vr(FR+32+4*tau,4)}, v5 offset:{64*(56-8*tau+rp)}")

    def mf(mu, tau, first=False):
        t = mu + tau
        acc = vr(ACC + 4 * t, 4)
        c = "0" if first else acc
        g(f"v_mfma_f32_16x16x32_bf16 {acc}, {vr(FR+4*mu,4)}, {vr(FR+32+4*tau,4)}, {c}")

    g("v_lshlrev_b32 v14, 5, v6")
    g("v_lshl_add_u32 v14, v7, 3, v14")
    g(f"v_sub_u32 v15, {CV_X+4088-512}, v14")
    g("s_lshl_b32 s36, s12, 10")
    g("v_subrev_u32 v15, s36, v15")
    KV = 112
    g(f"ds_read_b64 {vr(KV,2)}, v15 offset:512")
    g(f"ds_read_b64 {vr(KV+2,2)}, v15 offset:0")
    rdA(0, 0)
    for tau in range(8):
        rdB(0, tau)
    for mu in range(1, 8):
        rdA(0, mu)
    for mu in range(8):
        n = 2 * (7 - mu) + 3 * mu
        g(f"s_waitcnt lgkmcnt({min(n,15)})")
        for tau in range(8 - mu):
            mf(mu, tau, first=(mu == 0))
        rdA(1, mu)
        rdB(1, 7 - mu)
    for k in range(8):
        g(f"s_waitcnt lgkmcnt({min(3*(7-k),15)})")
        for mu in range(k + 1):
            mf(mu, 7 - k)
    g("s_barrier")
    stamp(g, 4)
    g("v_lshlrev_b32 v11, 4, v2")
    ljoin = g.newlabel("cvj")
    lw = [g.newlabel("cvw") for _ in range(4)]
    for w in range(1, 4):
        g(f"s_cmp_eq_u32 s12, {w}")
        g(f"s_cbranch_scc1 {lw[w]}")
    for w in range(4):
        g.label(lw[w])
        g.nop(4)
        for o in range(4):
            if o == w:
                continue
            j = w if w < o else w - 1
            for u in range(2):
                g(f"ds_write_b128 v11, {vr(ACC+4*(2*o+u),4)} offset:{((o*3+j)*2+u)*1024}")
        if w:
            for i in range(8):
                g(f"v_mov_b32 v{ACC+i}, v{ACC+8*w+i}")
        if w < 3:
            g(f"s_branch {ljoin}")
    g.label(ljoin)
    g("s_mul_i32 s36, s12, 6144")
    g("v_add_u32 v11, s36, v11")
    g("s_waitcnt lgkmcnt(0)")
    g("s_barrier")
    P = 48
    for j in range(6):
        g(f"ds_read_b128 {vr(P+4*j,4)}, v11 offset:{1024*j}")
    g("s_and_b32 s18, s3, 1")
    g("s_lshl_b32 s18, s18, 4")
    g("s_lshr_b32 s19, s19, s18")
    g("s_lshl_b32 s19, s19, 16")
    g("s_mov_b32 s37, 0xffff0000")
    g("s_lshl_b32 s36, s12, 10")
    g("s_add_u32 s36, s36, s16")
    U = 72
    for u in range(2):
        g(f"v_and_b32 v{U+4*u+0}, s37, v{KV+2*u+1}")
        g(f"v_lshlrev_b32 v{U+4*u+1}, 16, v{KV+2*u+1}")
        g(f"v_and_b32 v{U+4*u+2}, s37, v{KV+2*u}")
        g(f"v_lshlrev_b32 v{U+4*u+3}, 16, v{KV+2*u}")
        for r in range(4):
            g(f"v_mul_f32 v{U+4*u+r}, s19, v{U+4*u+r}")
        for r in range(4):
            g(f"v_cvt_pk_bf16_f32 v{U+4*u+r}, 0, v{U+4*u+r}")
    g("s_waitcnt lgkmcnt(0)")
    for u in range(2):
        a = ACC + 4 * u
        for j in range(3):
            for r in range(4):
                g(f"v_add_f32 v{a+r}, v{a+r}, v{P+4*(2*j+u)+r}")
        for r in range(4):
            g(f"v_cvt_pk_bf16_f32 v{a+r}, 0, v{a+r}")
        for r in range(4):
            g(f"v_add_f32 v{a+r}, v{a+r}, v{U+4*u+r}")
        g(f"v_cvt_pk_bf16_f32 v{a}, v{a}, v{a+1}")
        g(f"v_cvt_pk_bf16_f32 v{a+1}, v{a+2}, v{a+3}")
        g(f"buffer_store_dwordx2 {vr(a,2)}, v14, s[28:31], s36 offen offset:{512*u} {STF}")
    stamp(g, 5)
    if STAMPS: g("s_waitcnt vmcnt(0)")
    stamp_flush(g, 1, 6, 8)
    g("s_endpgm")


AT_K = 0
AT_V = 15360
AT_VG = 1008
AT_LDS = AT_V + 24 * AT_VG
NEG = 0xFF800000


def gen_attn(g):
    stamp(g, 0)
    if ATT_PRIO:
        g(f"s_setprio {ATT_PRIO}")
    g(f"s_load_dwordx2 s[8:9], s[0:1], {KA['ws']}")
    g("v_lshrrev_b32 v1, 6, v0")
    g("v_and_b32 v2, 63, v0")
    g("s_nop 0")
    g("v_readfirstlane_b32 s12, v1")
    g("s_lshl_b32 s13, s11, 7")
    g("s_sub_u32 s14, s13, 256")
    g("s_waitcnt lgkmcnt(0)")
    stamp(g, 1)
    make_srd(g, 20, 8, WS_QK4, SZ_QK4)
    make_srd(g, 24, 8, WS_VG, SZ_26)
    make_srd(g, 28, 8, WS_O4, SZ_26)
    g("s_mul_i32 s15, s10, 5")
    g("s_add_u32 s16, s15, 160")
    g("s_lshl_b32 s16, s16, 14")
    g("s_lshl_b32 s17, s14, 3")
    g("s_add_u32 s16, s16, s17")
    g("v_lshlrev_b32 v3, 4, v0")
    QF = 16
    KF = 24
    VF = 40
    M = 52
    O = 56
    S = 72
    MK = 120
    ST = 72
    lskip = g.newlabel("atk")
    g("s_cmp_eq_u32 s12, 3")
    g(f"s_cbranch_scc1 {lskip}")
    for j in range(5):
        g(f"s_add_u32 s17, s16, {16384*j}")
        g(f"buffer_load_dwordx4 {vr(ST+4*j,4)}, v3, s[20:23], s17 offen")
    g.label(lskip)
    g("v_mul_u32_u24 v4, 0x667, v0")
    g("v_lshrrev_b32 v4, 16, v4")
    g("v_mul_u32_u24 v5, 40, v4")
    g("v_sub_u32 v5, v0, v5")
    g("s_ashr_i32 s17, s14, 4")
    g("v_add_u32 v6, s17, v4")
    g("s_movk_i32 s18, 20480")
    g("v_mul_lo_u32 v6, v6, s18")
    g("s_mul_i32 s18, s10, 640")
    g("v_lshl_add_u32 v6, v5, 4, v6")
    g("v_add_u32 v6, s18, v6")
    g(f"v_mul_u32_u24 v7, {AT_VG}, v4")
    g("v_lshrrev_b32 v8, 1, v5")
    g("v_mul_u32_u24 v8, 48, v8")
    g("v_add_u32 v7, v7, v8")
    g("v_and_b32 v8, 1, v5")
    g("v_lshl_add_u32 v7, v8, 4, v7")
    g("v_cmp_gt_u32 vcc, 240, v0")
    g("s_and_saveexec_b64 s[32:33], vcc")
    for it in range(4):
        if it:
            g(f"v_add_u32 v6, {6*20480}, v6")
        g(f"buffer_load_dwordx4 {vr(ST+20+4*it,4)}, v6, s[24:27], 0 offen")
    g("s_mov_b64 exec, s[32:33]")
    g("v_and_b32 v8, 31, v2")
    g("v_lshrrev_b32 v9, 5, v2")
    g("s_lshl_b32 s17, s12, 5")
    g("s_add_u32 s38, s17, s13")
    g("v_add_u32 v10, s38, v8")
    g("v_lshlrev_b32 v10, 3, v10")
    g("v_lshl_add_u32 v11, v9, 15, v10")
    g("s_lshl_b32 s18, s15, 14")
    g(f"buffer_load_dwordx2 {vr(QF,2)}, v11, s[20:23], s18 offen")
    g("s_add_u32 s19, s18, 16384")
    g(f"buffer_load_dwordx2 {vr(QF+2,2)}, v11, s[20:23], s19 offen")
    g("s_add_u32 s19, s18, 65536")
    g(f"buffer_load_dwordx2 {vr(QF+4,2)}, v10, s[20:23], s19 offen")
    g("v_lshrrev_b32 v12, 1, v0")
    g(f"v_mul_u32_u24 v12, {AT_VG}, v12")
    g("v_and_b32 v13, 1, v0")
    g("v_lshl_add_u32 v12, v13, 4, v12")
    for i in range(4):
        g(f"v_mov_b32 v{O+i}, 0x3f803f80")
    g("v_cmp_gt_u32 vcc, 48, v0")
    g("s_and_saveexec_b64 s[32:33], vcc")
    g(f"ds_write_b128 v12, {vr(O,4)} offset:{AT_V+960}")
    g("s_mov_b64 exec, s[32:33]")
    g("v_lshlrev_b32 v13, 2, v9")
    g("v_sub_u32 v13, v8, v13")
    for r in range(16):
        c = 8 * (r >> 2) + (r & 3)
        g(f"v_cmp_gt_i32 s[{40+2*r}:{41+2*r}], {c}, v13")
    g("s_lshl_b32 s17, s12, 8")
    g("v_lshl_add_u32 v14, v8, 3, s17")
    g("v_mul_u32_u24 v15, 6144, v9")
    g("v_add_u32 v15, v15, v14")
    g("v_min_u32 v12, 20, v8")
    g("v_cmp_lt_u32 vcc, 27, v8")
    g("v_mov_b32 v13, 4")
    g("s_nop 1")
    g("v_cndmask_b32 v12, v12, v13, vcc")
    g("v_mul_u32_u24 v12, 48, v12")
    g("v_lshl_add_u32 v12, v9, 4, v12")
    g(f"s_mul_i32 s17, s12, {2*AT_VG}")
    g(f"s_add_u32 s17, s17, {AT_V}")
    g("v_add_u32 v12, s17, v12")
    g(f"v_mov_b32 v13, {NEG:#x}")
    for b in range(2):
        g(f"v_mov_b32 v{KF+8*b+6}, 0")
        g(f"v_mov_b32 v{KF+8*b+7}, 0")
    g(f"v_mov_b32 v{QF+6}, 0")
    g(f"v_mov_b32 v{QF+7}, 0")
    g("v_cmp_eq_u32 s[34:35], 1, v9")
    import struct
    c = (20 ** -0.5) * 1.4426950408889634
    cb = struct.unpack("<I", struct.pack("<f", c))[0]
    g(f"s_mov_b32 s36, {cb:#x}")
    g(f"s_mov_b32 s37, {cb:#x}")
    g(f"s_mov_b32 s39, {cb | 0x80000000:#x}")
    g(f"v_mov_b32 v{M}, 0xffff")
    g(f"v_mov_b32 v{M+1}, 0xffff0000")
    for j in range(8):
        g(f"v_cndmask_b32 v{MK+j}, 0, v{M}, s[{40+4*j}:{41+4*j}]")
        g(f"v_cndmask_b32 v{M+2}, 0, v{M+1}, s[{42+4*j}:{43+4*j}]")
        g(f"v_or_b32 v{MK+j}, v{MK+j}, v{M+2}")
    g("s_waitcnt vmcnt(3)")
    stamp(g, 2)
    lskip = g.newlabel("atk")
    g("s_cmp_eq_u32 s12, 3")
    g(f"s_cbranch_scc1 {lskip}")
    for j in range(5):
        g(f"ds_write_b128 v3, {vr(ST+4*j,4)} offset:{AT_K+3072*j}")
    g.label(lskip)
    g("v_cmp_gt_u32 vcc, 240, v0")
    g("s_and_saveexec_b64 s[32:33], vcc")
    for it in range(4):
        g(f"ds_write_b128 v7, {vr(ST+20+4*it,4)} offset:{AT_V+6*AT_VG*it}")
    g("s_mov_b64 exec, s[32:33]")
    g("s_waitcnt vmcnt(0)")
    g(f"v_cndmask_b32 v{QF+4}, v{QF+4}, 0, s[34:35]")
    g(f"v_cndmask_b32 v{QF+5}, v{QF+5}, 0, s[34:35]")
    g("s_waitcnt lgkmcnt(0)")
    g("s_barrier")
    stamp(g, 3)
    if ATT_PRIO2 is not None:
        g(f"s_setprio {ATT_PRIO2}")

    def kreads(tau, b):
        g(f"ds_read_b64 {vr(KF+8*b,2)}, v15 offset:{256*tau}")
        g(f"ds_read_b64 {vr(KF+8*b+2,2)}, v15 offset:{256*tau+3072}")
        g(f"ds_read_b64 {vr(KF+8*b+4,2)}, v14 offset:{256*tau+4*3072}")

    chunks = [[0, 8, 1], [2, 3, 4], [5, 6, 7]]
    korder = [t for c in chunks for t in c]
    vorder = []
    for c in chunks:
        for t in c:
            vorder += [2 * t, 2 * t + 1]

    def vread(i):
        g(f"ds_read_b128 {vr(VF+4*(i%3),4)}, v12 offset:{AT_VG*vorder[i]}")

    kreads(korder[0], 0)
    for ch in range(3):
        for tl in range(3):
            ki = 3 * ch + tl
            b = ki % 2
            if tl < 2:
                kreads(korder[ki + 1], 1 - b)
                g("s_waitcnt lgkmcnt(3)")
            else:
                vread(6 * ch)
                vread(6 * ch + 1)
                g("s_waitcnt lgkmcnt(2)")
            sreg = vr(S + 16 * tl, 16)
            g(f"v_mfma_f32_32x32x16_bf16 {sreg}, {vr(KF+8*b,4)}, {vr(QF,4)}, 0")
            g(f"v_mfma_f32_32x32x16_bf16 {sreg}, {vr(KF+8*b+4,4)}, {vr(QF+4,4)}, {sreg}")
        g.nop(12)
        if FINE: stamp(g, 7 + 3 * ch)
        lok = g.newlabel("atok")
        for tl in range(3):
            tau = chunks[ch][tl]
            if tau == 8:
                continue
            g(f"s_cmp_ge_u32 s38, {256-32*tau}")
            g(f"s_cbranch_scc1 {lok}")
            for r in range(16):
                g(f"v_mov_b32 v{S+16*tl+r}, v13")
        g.label(lok)
        if ch == 0:
            for r in range(16):
                g(f"v_cndmask_b32 v{S+16+r}, v{S+16+r}, v{S+r}, s[{40+2*r}:{41+2*r}]")
            lo, n = S + 16, 32
        else:
            lo, n = S, 48
        g(f"v_max3_f32 v{M+2}, v{lo}, v{lo+1}, v{lo+2}")
        g(f"v_max3_f32 v{M+3}, v{lo+3}, v{lo+4}, v{lo+5}")
        i = 6
        k = 0
        while i < n:
            g(f"v_max3_f32 v{M+2+k}, v{M+2+k}, v{lo+i}, v{lo+i+1}")
            k ^= 1
            i += 2
        g(f"v_max_f32 v{M+2}, v{M+2}, v{M+3}")
        g(f"v_mov_b32 v{M+3}, v{M+2}")
        g("s_nop 1")
        g(f"v_permlane32_swap_b32 v{M+2}, v{M+3}")
        g("s_nop 1")
        g(f"v_max_f32 v{M+2}, v{M+2}, v{M+3}")
        if ch == 0:
            g(f"v_mul_f32 v{M}, s39, v{M+2}")
            g(f"v_min_f32 v{M}, 0x7f7fffff, v{M}")
            g(f"v_mov_b32 v{M+1}, v{M}")
        else:
            g(f"v_mul_f32 v{M+2}, s39, v{M+2}")
            g(f"v_min_f32 v{M+2}, v{M+2}, v{M}")
            g(f"v_sub_f32 v{M+3}, v{M+2}, v{M}")
            g(f"v_exp_f32 v{M+3}, v{M+3}")
            g(f"v_mov_b32 v{M}, v{M+2}")
            g(f"v_mov_b32 v{M+1}, v{M+2}")
            for r in range(16):
                g(f"v_mul_f32 v{O+r}, v{O+r}, v{M+3}")
        if FINE: stamp(g, 8 + 3 * ch)
        if ch < 2:
            kreads(korder[3 * ch + 3], (3 * ch + 3) % 2)
        li = 0
        for tl in range(3):
            if ch == 0 and tl == 0:
                continue
            sb = S + 16 * tl
            for r in range(0, 16, 2):
                g(f"v_pk_fma_f32 {vr(sb+r,2)}, {vr(sb+r,2)}, s[36:37], {vr(M,2)}")
            for r in range(16):
                g(f"v_exp_f32 v{sb+r}, v{sb+r}")
            g("s_nop 0")
            for j in range(8):
                g(f"v_cvt_pk_bf16_f32 v{sb+j}, v{sb+2*j}, v{sb+2*j+1}")
            srcs = [sb]
            if ch == 0 and tl == 1:
                for j in range(8):
                    g(f"v_and_b32 v{S+j}, v{MK+j}, v{sb+j}")
                for j in range(8):
                    g(f"v_xor_b32 v{sb+j}, v{S+j}, v{sb+j}")
                srcs = [S, sb]
            for sp in srcs:
                for kp in range(2):
                    idx = 6 * ch + li
                    if li + 2 < 6:
                        vread(idx + 2)
                    extra = 3 if (ch < 2 and li < 2) else 0
                    nn = min(2, 5 - li) + extra
                    g(f"s_waitcnt lgkmcnt({nn})")
                    cc = "0" if idx == 0 else vr(O, 16)
                    if kp == 0:
                        g("s_nop 0")
                    g(f"v_mfma_f32_32x32x16_bf16 {vr(O,16)}, {vr(VF+4*(idx%3),4)}, {vr(sp+4*kp,4)}, {cc}")
                    li += 1
    g.nop(14)
    stamp(g, 5)
    g(f"v_cndmask_b32 v{M}, v{O+12}, v{O+8}, s[34:35]")
    g(f"v_rcp_f32 v{M}, v{M}")
    g("v_lshl_add_u32 v11, v9, 14, v10")
    for r in range(12):
        g(f"v_mul_f32 v{O+r}, v{O+r}, v{M}")
    for a in range(3):
        g(f"v_cvt_pk_bf16_f32 v{S+2*a}, v{O+4*a}, v{O+4*a+1}")
        g(f"v_cvt_pk_bf16_f32 v{S+2*a+1}, v{O+4*a+2}, v{O+4*a+3}")
    for a in range(3):
        g(f"s_add_u32 s19, s18, {2*a*16384}")
        if a == 2:
            g("s_andn2_b64 exec, exec, s[34:35]")
        g(f"buffer_store_dwordx2 {vr(S+2*a,2)}, v11, s[28:31], s19 offen {STF}")
    if STAMPS: g("s_waitcnt vmcnt(0)")
    if FINE:
        stamp(g, 6)
        stamp_flush(g, 1, 15, 8)
    else:
        stamp_flush(g, 1, 6, 8)
    dbg_end(g, 1)
    g("s_endpgm")


def gen_k2(g):
    name = "k2_kernel"
    kernel_begin(g, name)
    lat = g.newlabel("attn")
    lend = g.newlabel("end")
    g("s_cmp_ge_u32 s2, 1152")
    g(f"s_cbranch_scc1 {lend}")
    g("s_cmp_lt_u32 s2, 512")
    g(f"s_cbranch_scc1 {lat}")
    g("s_sub_u32 s3, s2, 512")
    gen_conv(g)
    g.label(lat)
    g("s_and_b32 s4, s2, 7")
    g("s_lshr_b32 s5, s2, 3")
    g("s_lshr_b32 s10, s5, 4")
    g("s_lshl_b32 s10, s10, 3")
    g("s_add_u32 s10, s10, s4")
    g("s_and_b32 s11, s5, 15")
    gen_attn(g)
    g.label(lend)
    g("s_endpgm")
    return name


G2_NS = 5
G2_STAGE = 12288


def gen_gemm2(g):
    NS = G2_NS
    NIT = 20
    stamp(g, 0)
    g(f"s_load_dwordx4 s[4:7], s[0:1], {KA['wo']}")
    g(f"s_load_dwordx2 s[8:9], s[0:1], {KA['ws']}")
    g("s_and_b32 s10, s2, 7")
    g("s_lshr_b32 s11, s2, 3")
    g("s_and_b32 s12, s11, 1")
    g("s_lshl_b32 s10, s10, 1")
    g("s_add_u32 s10, s10, s12")
    g("s_lshr_b32 s11, s11, 1")
    g("v_lshrrev_b32 v1, 6, v0")
    g("v_and_b32 v2, 63, v0")
    g("s_nop 0")
    g("v_readfirstlane_b32 s12, v1")
    g("v_lshlrev_b32 v3, 4, v2")
    g("s_lshl_b32 s14, s12, 15")
    g("v_add_u32 v3, s14, v3")
    g("v_lshrrev_b32 v4, 3, v2")
    g("s_movk_i32 s13, 1280")
    g("v_mul_lo_u32 v7, v4, s13")
    g("v_bfe_u32 v5, v2, 2, 1")
    g("v_bfe_u32 v6, v2, 4, 1")
    g("v_xor_b32 v5, v5, v6")
    g("v_lshl_add_u32 v7, v5, 6, v7")
    g("v_and_b32 v5, 3, v2")
    g("v_lshl_add_u32 v7, v5, 4, v7")
    g("s_mul_i32 s14, s12, 10240")
    g("v_add_u32 v7, s14, v7")
    g("s_lshr_b32 s15, s12, 1")
    g("s_and_b32 s16, s12, 1")
    g("v_and_b32 v8, 31, v2")
    g("v_lshrrev_b32 v9, 5, v2")
    g("s_lshl_b32 s17, s15, 9")
    g("v_lshl_add_u32 v11, v8, 3, s17")
    g("v_lshl_add_u32 v11, v9, 11, v11")
    g("v_bfe_u32 v13, v2, 2, 2")
    g("v_lshl_add_u32 v14, v9, 3, v13")
    g("v_lshlrev_b32 v14, 7, v14")
    g("v_bfe_u32 v15, v2, 4, 1")
    g("v_lshl_add_u32 v14, v15, 5, v14")
    g("v_lshl_add_u32 v14, v5, 3, v14")
    g("v_add_u32 v14, 8192, v14")
    g("v_lshrrev_b32 v15, 1, v13")
    g("v_xor_b32 v15, s16, v15")
    g("v_lshl_add_u32 v15, v15, 6, v14")
    g("s_waitcnt lgkmcnt(0)")
    stamp(g, 1)
    make_srd(g, 20, 8, WS_O4, SZ_26)
    make_srd(g, 24, 4, 0, 640 * 1280)
    g("s_lshl_b32 s28, s10, 10")
    g("s_add_u32 s29, s28, 16384")
    g("s_lshl_b32 s30, s11, 7")
    g("s_lshl_b32 s32, s12, 11")
    g("s_lshl_b32 s33, s12, 10")
    g("s_lshl_b32 s34, s11, 1")
    g("s_mul_i32 s35, s10, 7")
    g("s_add_u32 s34, s34, s35")
    g("s_mul_hi_u32 s35, s34, 0xccccccd")
    g("s_mul_i32 s35, s35, 20")
    g("s_sub_u32 s34, s34, s35")
    g("s_lshl_b32 s35, s34, 17")
    g("s_add_u32 s28, s28, s35")
    g("s_add_u32 s29, s29, s35")
    g("s_mul_i32 s35, s34, 40960")
    g("s_add_u32 s30, s30, s35")
    g(f"s_mov_b32 s37, {8*16384}")
    g(f"s_mov_b32 s31, {32*1280}")

    def dma_piece(it, j):
        base = (it % NS) * G2_STAGE
        sm, off, vo, srd, so, inc = [(32, 0, 3, 20, 28, 35), (32, 1024, 3, 20, 29, 35), (33, 8192, 7, 24, 30, 36)][j]
        if j == 0:
            g("s_add_u32 s34, s34, 1")
            g("s_cmp_eq_u32 s34, 20")
            g(f"s_cselect_b32 s35, {(8*16384-160*16384) & 0xffffffff:#x}, s37")
            g(f"s_cselect_b32 s36, {(32*1280-640*1280) & 0xffffffff:#x}, s31")
            g("s_cselect_b32 s34, 0, s34")
        g(f"s_add_u32 m0, s{sm}, {base+off}")
        g("s_nop 0")
        g(f"buffer_load_dwordx4 v{vo}, s[{srd}:{srd+3}], s{so} offen lds")
        g(f"s_add_u32 s{so}, s{so}, s{inc}")

    def issue_dma(it):
        for j in range(3):
            dma_piece(it, j)

    for it in range(NS - 1):
        issue_dma(it)
    ACC = 32
    FR = 64

    def read_list(it, ks, b):
        base = (it % NS) * G2_STAGE
        L = []
        for half in range(2):
            L.append(f"ds_read_b64_tr_b16 {vr(FR+12*b+8+2*half,2)}, v15 offset:{base+2048*ks+512*half}")
        for mt in range(2):
            for a in range(2):
                L.append(f"ds_read_b64 {vr(FR+12*b+4*mt+2*a,2)}, v11 offset:{base+4096*ks+1024*a+256*mt}")
        return L

    def mfmas(b, first, after=((), ())):
        for mt in range(2):
            acc = vr(ACC + 16 * mt, 16)
            c = "0" if first else acc
            g(f"v_mfma_f32_32x32x16_bf16 {acc}, {vr(FR+12*b+8,4)}, {vr(FR+12*b+4*mt,4)}, {c}")
            for x in after[mt]:
                if callable(x):
                    x()
                else:
                    g(x)

    for it in range(NIT):
        n = 3 * (min(it + NS - 2, NIT - 1) - it)
        g(f"s_waitcnt vmcnt({n}) lgkmcnt(0)")
        g("s_barrier")
        if it in (0, 5, 10, 15):
            stamp(g, 2 + it // 5)
        pf = it + NS - 1 < NIT
        nx = it + NS - 1
        d = [(lambda j=j: dma_piece(nx, j)) for j in range(3)] if pf else [(lambda: None)] * 3
        r0 = read_list(it, 0, 0)
        r1 = read_list(it, 1, 1)
        if it > 0:
            mfmas(1, False, (r0[:3], r0[3:] + [d[0]]))
        else:
            for x in r0:
                g(x)
            d[0]()
        g("s_waitcnt lgkmcnt(0)")
        mfmas(0, it == 0, (r1[:3] + [d[1]], r1[3:] + [d[2]]))
    g("s_waitcnt lgkmcnt(0)")
    mfmas(1, False)
    g("s_barrier")
    stamp(g, 6)
    g("s_mul_i32 s17, s15, 9216")
    g("s_lshl_b32 s18, s16, 6")
    g("s_add_u32 s17, s17, s18")
    g("v_mul_u32_u24 v16, 144, v8")
    g("v_lshl_add_u32 v16, v9, 3, v16")
    g("v_add_u32 v16, s17, v16")
    g.nop(10)
    k = 0
    for mt in range(2):
        for a in range(4):
            acc = ACC + 16 * mt + 4 * a
            t = FR + 2 * (k % 8)
            k += 1
            g(f"v_cvt_pk_bf16_f32 v{t}, v{acc}, v{acc+1}")
            g(f"v_cvt_pk_bf16_f32 v{t+1}, v{acc+2}, v{acc+3}")
            g(f"ds_write_b64 v16, {vr(t,2)} offset:{4608*mt+16*a}")
    make_srd(g, 36, 6, 0, 2 * SZ_26)
    g("v_lshrrev_b32 v17, 3, v0")
    g("v_and_b32 v18, 7, v0")
    g("v_mul_u32_u24 v19, 144, v17")
    g("v_lshl_add_u32 v19, v18, 4, v19")
    g("s_movk_i32 s13, 2560")
    g("v_mul_lo_u32 v20, v17, s13")
    g("v_lshl_add_u32 v20, v18, 4, v20")
    g("s_mul_i32 s40, s10, 327680")
    g("s_lshl_b32 s41, s11, 7")
    g("s_add_u32 s40, s40, s41")
    g("s_add_u32 s40, s40, 1280")
    g("s_waitcnt lgkmcnt(0)")
    g("s_barrier")
    for it in range(4):
        g(f"ds_read_b128 {vr(ACC+4*it,4)}, v19 offset:{4608*it}")
    for it in range(4):
        g(f"s_waitcnt lgkmcnt({3-it})")
        g(f"buffer_store_dwordx4 {vr(ACC+4*it,4)}, v20, s[36:39], s40 offen {NTO}")
        g(f"s_add_u32 s40, s40, {32*2560}")
    stamp(g, 7)
    if STAMPS: g("s_waitcnt vmcnt(0)")
    stamp_flush(g, 2, 8, 8)
    dbg_end(g, 2)
    g("s_endpgm")


def gen_k3(g):
    name = "k3_kernel"
    kernel_begin(g, name)
    la3 = g.newlabel("a3")
    lend = g.newlabel("end")
    g("s_cmp_ge_u32 s2, 160")
    g(f"s_cbranch_scc1 {la3}")
    gen_gemm2(g)
    g.label(la3)
    g("s_cmp_ge_u32 s2, 240")
    g(f"s_cbranch_scc1 {lend}")
    g("v_lshrrev_b32 v1, 6, v0")
    g("s_sub_u32 s3, s2, 160")
    g("s_lshl_b32 s3, s3, 2")
    g("v_readfirstlane_b32 s19, v1")
    g("s_nop 3")
    g("s_add_u32 s3, s3, s19")
    gen_a3(g, "s3")
    g.label(lend)
    g("s_endpgm")
    return name


def main(path):
    g = G()
    k2_lds = AT_LDS
    g.raw(f"; @launch kernel=k1_kernel grid=({N_G1_WG+N_AUX_WG},1,1) block=(256,1,1) lds={G1_NS*G1_STAGE}")
    g.raw(f"; @launch kernel=k2_kernel grid=({N_CONV_WG+512},1,1) block=(256,1,1) lds={k2_lds}")
    g.raw(f"; @launch kernel=k3_kernel grid=(240,1,1) block=(256,1,1) lds={G2_NS*G2_STAGE}")
    g.raw('.amdgcn_target "amdgcn-amd-amdhsa--gfx950"')
    g.raw(".text")
    gen_k1(g)
    gen_k2(g)
    gen_k3(g)
    g.raw('.section .rodata,"a"')
    g.raw(".p2align 6")
    kernel_desc(g, "k1_kernel", 256)
    g.raw(".p2align 6")
    kernel_desc(g, "k2_kernel", 128)
    g.raw(".p2align 6")
    kernel_desc(g, "k3_kernel", 128)
    open(path, "w").write("\n".join(g.lines) + "\n")


if __name__ == "__main__":
    if "--stamps" in sys.argv:
        STAMPS = True
        sys.argv.remove("--stamps")
    for a in list(sys.argv[1:]):
        if "=" in a:
            k_, v_ = a.split("=")
            globals()[k_] = eval(v_)
            sys.argv.remove(a)
    main(sys.argv[1] if len(sys.argv) > 1 else f"cdna_kernels/{NAME}.s")
```
